```python
import torch

def _softmax(x, axis=-1):
    return torch.softmax(x, dim=axis)

def _gelu(x):
    return torch.nn.functional.gelu(x, approximate='tanh')

def _silu(x):
    return torch.nn.functional.silu(x)

def _sigmoid(x):
    return torch.sigmoid(x)

def _layernorm(x, axis=-1, eps=1e-05):
    m = x.mean(dim=axis, keepdim=True)
    v = x.var(dim=axis, keepdim=True, unbiased=False)
    return (x - m) / torch.sqrt(v + eps)

def _scatter_add(tgt, idx, src, axis=0):
    return tgt.clone().index_add_(axis, idx, src)

def _segment_sum(src, seg, n):
    out = torch.zeros((n,) + src.shape[1:], dtype=src.dtype)
    return out.index_add_(0, seg, src)

def _pad(x, pw):
    flat = tuple((v for pair in reversed(pw) for v in pair))
    return torch.nn.functional.pad(x, flat)
kernel_name = 'adaLN_cond__sliding_local_dilated__geglu_ffn__prompt'

def setup_inputs():

    _w = lambda a: (lambda t: t.to(torch.bfloat16) if t.is_floating_point() else t)(torch.as_tensor(a))

    def _A_setup():
        B, S, D = (1, 2048, 640)
        return {'x': _w((lambda *s: torch.randn(*s, dtype=torch.bfloat16) * 0.05)(B, S, D)), 'wqkv': _w((lambda *s: torch.randn(*s, dtype=torch.bfloat16) * 0.05)(D, 3 * D)), 'wo': _w((lambda *s: torch.randn(*s, dtype=torch.bfloat16) * 0.05)(D, D))}
    _A_in = _A_setup()

    def _B_setup():
        B, S, D, F = (1, 2048, 640, 1536)
        return {'x': _w((lambda *s: torch.randn(*s, dtype=torch.bfloat16) * 0.05)(B, S, D)), 'w_gate': _w((lambda *s: torch.randn(*s, dtype=torch.bfloat16) * 0.05)(D, F)), 'w_up': _w((lambda *s: torch.randn(*s, dtype=torch.bfloat16) * 0.05)(D, F)), 'w_down': _w((lambda *s: torch.randn(*s, dtype=torch.bfloat16) * 0.05)(F, D))}
    _B_in = _B_setup()
    return {'A_x': _A_in['x'], 'A_wqkv': _A_in['wqkv'], 'A_wo': _A_in['wo'], 'B_x': _B_in['x'], 'B_w_gate': _B_in['w_gate'], 'B_w_up': _B_in['w_up'], 'B_w_down': _B_in['w_down'], 'c': _w((lambda *s: torch.randn(*s, dtype=torch.bfloat16) * 0.1)(1, 640) * 8.0), 'w_mod': _w((lambda *s: torch.randn(*s, dtype=torch.bfloat16) * 0.1)(640, 6 * 640) * 640 ** (-0.5) * 8.0)}

def reference(A_x, A_wqkv, A_wo, B_x, B_w_gate, B_w_up, B_w_down, c, w_mod):

    def _A_ref(x, wqkv, wo):
        B, S, D = x.shape
        H = 32
        Dh = D // H
        W, dil = (8, 2)
        qkv = (lambda x, *d: x.permute(*d))((x @ wqkv).reshape(B, S, 3, H, Dh), 2, 0, 3, 1, 4)
        q, k, v = (qkv[0], qkv[1], qkv[2])
        scale = Dh ** (-0.5)
        pos = torch.arange(S)
        off = torch.arange(W) * dil
        idx = pos[:, None] - off[None, :]
        mask = idx >= 0
        idx_c = torch.where(mask, idx, 0).reshape(-1)
        kg = k[:, :, idx_c, :].reshape(B, H, S, W, Dh)
        vg = v[:, :, idx_c, :].reshape(B, H, S, W, Dh)
        logits = torch.einsum('bhsd,bhswd->bhsw', q, kg) * scale
        logits = torch.where(mask[None, None, :, :], logits, -1000000000.0)
        attn = _softmax(logits, axis=-1)
        o = torch.einsum('bhsw,bhswd->bhsd', attn, vg)
        return (lambda x, *d: x.permute(*d))(o, 0, 2, 1, 3).reshape(B, S, D) @ wo

    def _B_ref(x, w_gate, w_up, w_down):
        return _gelu(x @ w_gate) * (x @ w_up) @ w_down
    x = A_x
    mod = (_silu(c) @ w_mod).reshape(c.shape[0], 6, 1, -1)
    sa, ca, ga, sb, cb, gb = (mod[:, 0].clone(), mod[:, 1].clone(), mod[:, 2].clone(), mod[:, 3].clone(), mod[:, 4].clone(), mod[:, 5].clone())
    h = _layernorm(x, axis=-1) * (1 + ca) + sa
    x = x + ga * _A_ref(h, A_wqkv, A_wo)
    h = _layernorm(x, axis=-1) * (1 + cb) + sb
    x = x + gb * _B_ref(h, B_w_gate, B_w_up, B_w_down)
    return x
```

```python
import re

REG_RE = re.compile(r'^(-|\|)?\|?([vas])(?:(\d+)|\[(\d+):(\d+)\])\|?$')

def parse_reg(tok):
    t = tok.strip()
    t = re.sub(r'^(neg|abs)\((.*)\)$', r'\2', t)
    t = t.lstrip('-').strip('|')
    if t == 'vcc': return [('s', 106), ('s', 107)]
    if t == 'vcc_lo': return [('s', 106)]
    if t == 'vcc_hi': return [('s', 107)]
    if t == 'exec': return [('s', 126), ('s', 127)]
    if t == 'exec_lo': return [('s', 126)]
    if t == 'exec_hi': return [('s', 127)]
    if t == 'm0': return [('s', 124)]
    m = re.match(r'^([vas])(\d+)$', t)
    if m: return [(m.group(1), int(m.group(2)))]
    m = re.match(r'^([vas])\[(\d+):(\d+)\]$', t)
    if m: return [(m.group(1), i) for i in range(int(m.group(2)), int(m.group(3))+1)]
    return []

def split_ops(s):
    ops = []; depth = 0; cur = ''
    for ch in s:
        if ch in '[(': depth += 1
        if ch in '])': depth -= 1
        if ch == ',' and depth == 0: ops.append(cur.strip()); cur = ''
        else: cur += ch
    if cur.strip(): ops.append(cur.strip())
    return ops

TRANS = ('v_exp_f32', 'v_log_f32', 'v_rcp_f32', 'v_rsq_f32', 'v_sqrt_f32', 'v_sin_f32', 'v_cos_f32', 'v_rcp_iflag_f32')

class Ins:
    __slots__ = ('text', 'mn', 'defs', 'uses', 'kind', 'passes', 'srcc', 'is_label', 'comment', 'storedata', 'dpp', 'constuse', 'lanesel')
    def __init__(self, text):
        self.text = text
        self.defs = []; self.uses = []; self.kind = None; self.passes = 0; self.srcc = []
        self.is_label = False; self.storedata = []; self.dpp = False; self.constuse = []; self.lanesel = []
        t = text.split(';')[0].strip()
        if not t:
            self.kind = 'none'; self.mn = ''; return
        if t.endswith(':'):
            self.kind = 'label'; self.mn = t; self.is_label = True; return
        if t.startswith('.'):
            self.kind = 'directive'; self.mn = t; return
        parts = t.split(None, 1)
        mn = parts[0]; self.mn = mn
        rest = parts[1] if len(parts) > 1 else ''
        ops = split_ops(rest)
        if ops:
            last = ops[-1].split()
            mods = last[1:]
            ops[-1] = last[0] if last else ''
        else: mods = []
        modtext = ' '.join(mods)
        R = [parse_reg(o) for o in ops]
        base = re.sub(r'_(e32|e64|dpp|sdwa)$', '', mn)
        if mn.startswith('v_mfma'):
            self.kind = 'mfma'
            self.passes = 8 if '32x32x16' in mn else 4
            assert '32x32x16' in mn or '16x16x32' in mn, mn
            self.defs = R[0]; self.uses = R[1]+R[2]+R[3]; self.srcc = R[3]
        elif mn.startswith('v_cmp'):
            self.kind = 'valu'; self.defs = R[0]; self.uses = sum(R[1:], [])
            self.constuse = [r for r in self.uses if r[0] == 's']
        elif base in ('v_readfirstlane_b32', 'v_readlane_b32'):
            self.kind = 'readlane'; self.defs = R[0]; self.uses = R[1]
            if len(R) > 2: self.lanesel = R[2]; self.uses = self.uses+R[2]
        elif base in ('v_permlane16_swap_b32', 'v_permlane32_swap_b32'):
            self.kind = 'permlane'; self.defs = R[0]+R[1]; self.uses = R[0]+R[1]
        elif mn.startswith('v_'):
            self.kind = 'trans' if base in TRANS else 'valu'
            self.defs = R[0]; self.uses = sum(R[1:], [])
            if base in ('v_fmac_f32', 'v_dot2c_f32_bf16', 'v_writelane_b32'): self.uses = self.uses+R[0]
            if base in ('v_add_co_u32', 'v_sub_co_u32', 'v_addc_co_u32', 'v_subb_co_u32'):
                self.defs = R[0]+R[1]; self.uses = sum(R[2:], [])
            if '_dpp' in mn or 'row_' in modtext or 'quad_perm' in modtext:
                self.dpp = True
                self.uses = self.uses+R[0]
            self.constuse = [r for r in self.uses if r[0] == 's']
        elif mn.startswith('ds_read') or mn.startswith('ds_bpermute') or mn.startswith('ds_swizzle') or mn.startswith('ds_permute'):
            self.kind = 'ds'; self.defs = R[0]; self.uses = sum(R[1:], [])
        elif mn.startswith('ds_'):
            self.kind = 'ds'; self.uses = sum(R, [])
        elif mn.startswith('buffer_load') or mn.startswith('buffer_atomic'):
            self.kind = 'vmem'
            if 'lds' in mods:
                self.uses = sum(R, [])+[('s', 124)]; self.kind = 'vmem'
            elif mn.startswith('buffer_atomic'):
                self.uses = sum(R, []); self.defs = R[0] if 'sc0' in mods else []
            else:
                self.defs = R[0]; self.uses = sum(R[1:], [])
        elif mn.startswith('buffer_store'):
            self.kind = 'vmem'; self.uses = sum(R, [])
            if 'x3' in mn or 'x4' in mn: self.storedata = R[0]
        elif mn.startswith('buffer_'):
            self.kind = 'vmem'
        elif mn.startswith('global_load'):
            self.kind = 'vmem'; self.defs = R[0]; self.uses = sum(R[1:], [])
        elif mn.startswith('global_store'):
            self.kind = 'vmem'; self.uses = sum(R, [])
            if 'x3' in mn or 'x4' in mn: self.storedata = R[1]
        elif mn == 's_nop':
            self.kind = 'nop'; self.passes = int(ops[0], 0)+1
        elif mn in ('s_waitcnt', 's_barrier', 's_endpgm', 's_setprio', 's_sleep'):
            self.kind = 'salu0'
        elif mn.startswith('s_cbranch') or mn == 's_branch':
            self.kind = 'branch'
        elif mn.startswith('s_cmp') or mn.startswith('s_bitcmp'):
            self.kind = 'salu'; self.uses = sum(R, [])
        elif mn.startswith('s_load') or mn.startswith('s_memtime') or mn.startswith('s_memrealtime'):
            self.kind = 'smem'; self.defs = R[0]; self.uses = sum(R[1:], [])
        elif mn.startswith('s_'):
            self.kind = 'salu'; self.defs = R[0]; self.uses = sum(R[1:], [])
            if 'saveexec' in mn: self.defs = self.defs+[('s', 126), ('s', 127)]
        else:
            raise ValueError('unknown instruction: '+text)

def is_valu(i): return i.kind in ('valu', 'trans', 'permlane', 'readlane')

class Asm:
    def __init__(self):
        self.items = []
        self.vm = []
        self.lg = []
        self._tok = 0
    def __call__(self, s):
        for line in s.split('\n'):
            line = line.strip()
            if line: self.items.append(line)
    def label(self, name): self.items.append(name+':')
    def comment(self, s): self.items.append('; '+s)
    def tok(self):
        self._tok += 1; return self._tok
    def vmem(self, s, optional=False):
        self(s)
        if optional: return None
        t = self.tok(); self.vm.append(t); return t
    def lds(self, s):
        self(s); t = self.tok(); self.lg.append(t); return t
    def wait_vm(self, t):
        if t is None or t not in self.vm: return
        i = self.vm.index(t); n = len(self.vm)-1-i
        n = min(n, 63)
        self(f's_waitcnt vmcnt({n})')
        self.vm = self.vm[len(self.vm)-n:] if n else []
    def wait_lg(self, t):
        if t is None or t not in self.lg: return
        i = self.lg.index(t); n = len(self.lg)-1-i
        n = min(n, 15)
        self(f's_waitcnt lgkmcnt({n})')
        self.lg = self.lg[len(self.lg)-n:] if n else []
    def wait_all_vm(self):
        self('s_waitcnt vmcnt(0)'); self.vm = []
    def wait_all_lg(self):
        self('s_waitcnt lgkmcnt(0)'); self.lg = []
    def wait_all(self):
        self('s_waitcnt vmcnt(0) lgkmcnt(0)'); self.vm = []; self.lg = []
    def reset_counts(self):
        self.vm = []; self.lg = []

def overlap(a, b):
    sb = set(b)
    return any(x in sb for x in a)

def required_gap(p, c):
    need = 0
    pv = is_valu(p)
    if p.kind == 'mfma':
        D = p.defs
        if c.kind == 'mfma':
            if overlap(D, c.srcc):
                if c.srcc == D and c.passes == p.passes: pass
                else: need = max(need, 6 if p.passes == 4 else 10)
            ab = [r for r in c.uses if r not in c.srcc] if c.srcc else c.uses
            ab = c.uses[:len(c.uses)-len(c.srcc)]
            if overlap(D, ab): need = max(need, 8 if p.passes == 4 else 12)
            if overlap(D, c.defs) and not (c.srcc == D):
                need = max(need, 6 if p.passes == 4 else 10)
        elif is_valu(c) or c.kind in ('vmem', 'ds'):
            if overlap(D, c.uses) or overlap(D, c.defs): need = max(need, 8 if p.passes == 4 else 12)
        if is_valu(c) and p.srcc and overlap(p.srcc, c.defs): need = max(need, 3 if p.passes == 4 else 7)
    if pv:
        vdefs = [r for r in p.defs if r[0] in 'va']
        sdefs = [r for r in p.defs if r[0] == 's']
        if c.kind == 'mfma' and overlap(vdefs, c.uses): need = max(need, 2)
        if c.kind == 'permlane' and overlap(vdefs, c.uses): need = max(need, 2)
        if c.kind == 'readlane' and overlap(vdefs, c.uses): need = max(need, 1)
        if c.dpp and overlap(vdefs, c.uses): need = max(need, 2)
        if p.kind == 'trans' and is_valu(c) and c.kind != 'trans' and overlap(vdefs, c.uses): need = max(need, 1)
        if p.kind == 'trans' and c.kind == 'trans' and overlap(vdefs, c.uses): need = max(need, 1)
        if sdefs:
            if is_valu(c) and overlap(sdefs, c.constuse): need = max(need, 2)
            if c.kind == 'readlane' and overlap(sdefs, c.lanesel): need = max(need, 4)
            if c.kind == 'vmem' and overlap(sdefs, c.uses): need = max(need, 5)
            if c.kind in ('salu', 'smem', 'branch') and (overlap(sdefs, c.uses) or (c.kind == 'branch' and 'vcc' in c.mn and overlap(sdefs, [('s', 106), ('s', 107)]))):
                need = max(need, 4)
    if p.kind == 'salu' and ('s', 124) in p.defs and c.kind == 'vmem' and ('s', 124) in c.uses: need = max(need, 1)
    if p.kind == 'salu' and overlap(p.defs, [('s', 126), ('s', 127)]):
        if c.dpp or c.kind in ('permlane', 'readlane'): need = max(need, 1)
    if p.storedata and (is_valu(c) or c.kind in ('ds', 'vmem', 'mfma')) and overlap(p.storedata, c.defs): need = max(need, 2)
    return need

LOOKBACK = 24
def hazard_pass(lines):
    out = []
    n_nops = 0
    for text in lines:
        c = Ins(text)
        if c.kind in ('none', 'directive', 'label'):
            out.append(c); continue
        need = 0; dist = 0; seen = 0
        for p in reversed(out):
            if p.kind in ('none', 'directive', 'label'): continue
            g = required_gap(p, c)
            if g > dist: need = max(need, g-dist)
            dist += p.passes if p.kind == 'nop' else 1
            seen += 1
            if dist >= 20: break
        while need > 0:
            k = min(need, 16)
            out.append(Ins(f's_nop {k-1}')); need -= k; n_nops += 1
        out.append(c)
    return [i.text for i in out], n_nops
```

```python
from layout import *
import gen as G
from gen import vr, ar, stamp, set_exec, flag_store, poll_flags, WS, SA, SB, SC_, sW, sSG, sM, sN, sROT, sFL, vL, f2u, srd, wdma_setup, wgroup_row0, newlab

T_OFF = [0, 40, 80, 120, None, 160, 200, None]
vT16, vT16b, vWD, vAC, vAX, vAV, vGS = 'v8', 'v9', 'v10', 'v11', 'v12', 'v13', 'v14'
vHC, vHX, vHV, vHG = 'v15', 'v16', 'v17', 'v18'
ACC = 20; HACC = 84; XR = 108; DEPTH = 6; HB = 156; HH = 172; GS = 176; TMP = 208; HRAW = 216; RP = 236; RPO = 244
WF = 0
def acc(T, t): return ACC+(T*8+t)*4
def xr(i, T): return XR+((i % DEPTH)*2+T)*4
def hb(i, T): return HB+((i & 1)*2+T)*4
def gs(i): return GS+(i & 1)*16

def waddr(t, i, hi, halo=False):
    if t == 4: v = vHX if halo else vAX; off = 0
    elif t == 7: v = vHV if halo else vAV; off = 0
    else: v = vHC if halo else vAC; off = T_OFF[t]
    ib = i if halo else (i % 8)
    return v, ib*7680+hi*240+off

def transform_ops(src, dst, g):
    ops = []
    mix = []
    for d in range(4):
        t0 = TMP+(2*d) % 8; t1 = t0+1
        mix.append(f'v_fma_mix_f32 {vr(t0)}, {vr(src+d)}, {vr(g+2*d)}, {vr(g+8+2*d)} op_sel_hi:[1,0,0]')
        mix.append(f'v_fma_mix_f32 {vr(t1)}, {vr(src+d)}, {vr(g+2*d+1)}, {vr(g+8+2*d+1)} op_sel:[1,0,0] op_sel_hi:[1,0,0]')
    cv = [f'v_cvt_pk_bf16_f32 {vr(dst+d)}, {vr(TMP+2*d)}, {vr(TMP+2*d+1)}' for d in range(4)]
    ops = mix[0:4]+[cv[0]]+mix[4:6]+[cv[1]]+mix[6:8]+[cv[2], cv[3]]
    return ops

def gs_reads(a, i, addr=vGS, rel=None, dst=None):
    ii = i if rel is None else rel
    d = gs(i) if dst is None else dst
    toks = []
    for (o2, r) in ((0, 0), (16, 4), (2560, 8), (2576, 12)):
        toks.append(f'ds_read_b128 {vr(d+r,4)}, {addr} offset:{128*ii+o2}')
    return toks

class Repack:
    def __init__(self, a): self.a = a
    def setup(self):
        a = self.a
        a('s_lshl_b32 s84, s2, 2'); a(f's_add_u32 s84, s84, {sW}')
        a(f'v_lshlrev_b32 v19, 2, {vL}')
    def unit_loads(self, u):
        a = self.a
        ptr, nrows, ncolb, pitch = [(G.P_WO, 640, 5, 1280), (G.P_WG, 640, 12, 3072), (G.P_WU, 640, 12, 3072), (G.P_WD, 1536, 5, 1280)][u]
        nkc = nrows//8; nun = nkc*ncolb
        ops = []
        ops.append(f's_mov_b32 s48, s{ptr}'); ops.append(f's_mov_b32 s49, s{ptr+1}')
        ops.append(f's_mov_b32 s50, {nrows*pitch}'); ops.append('s_mov_b32 s51, 0x20000')
        magic = (1 << 20)//nkc+1
        ops.append(f's_mul_i32 s85, s84, {magic}'); ops.append('s_lshr_b32 s85, s85, 20')
        ops.append(f's_mul_i32 s86, s85, {nkc}'); ops.append('s_sub_u32 s86, s84, s86')
        ops.append(f's_mul_i32 s87, s86, {8*pitch}'); ops.append('s_lshl_b32 s88, s85, 8'); ops.append('s_add_u32 s87, s87, s88')
        ops.append(f's_cmp_lt_u32 s84, {nun}'); ops.append('s_cselect_b32 s87, s87, 0x40000000')
        loads = []
        for e in range(8):
            loads.append((f'buffer_load_dword {vr(RP+e)}, v19, {SB}, s87 offen', f's_add_u32 s87, s87, {pitch}' if e < 7 else None))
        return ops, loads
    def unit_stores(self, u):
        ops = []
        if u == 0:
            ops += [f'v_lshrrev_b32 v1, 3, {vL}', 'v_mul_u32_u24 v1, 20480, v1', f'v_and_b32 v2, 7, {vL}', 'v_lshl_add_u32 v1, v2, 5, v1']
            ops += ['s_mul_i32 s87, s85, 163840', 's_lshr_b32 s88, s86, 2', 's_lshl_b32 s88, s88, 10', 's_add_u32 s87, s87, s88',
                    's_and_b32 s88, s86, 3', 's_lshl_b32 s88, s88, 8', 's_add_u32 s87, s87, s88', f's_add_u32 s87, s87, {WO_OFF}']
            nun = 400
        elif u in (1, 2):
            ops += [f'v_lshrrev_b32 v1, 4, {vL}', 'v_mul_u32_u24 v1, 81920, v1', f'v_and_b32 v2, 15, {vL}', 'v_lshl_add_u32 v1, v2, 5, v1']
            ops += ['s_mul_i32 s87, s85, 327680', 's_lshr_b32 s88, s86, 1', 's_lshl_b32 s88, s88, 11', 's_add_u32 s87, s87, s88',
                    's_and_b32 s88, s86, 1', 's_lshl_b32 s88, s88, 9', 's_add_u32 s87, s87, s88', f's_add_u32 s87, s87, {WGU_OFF+1024*(u-1)}']
            nun = 960
        else:
            ops += [f'v_lshrrev_b32 v1, 3, {vL}', 's_lshl_b32 s88, s85, 3', 'v_add_u32 v1, s88, v1', 'v_mul_u32_u24 v2, 52, v1', 'v_lshrrev_b32 v2, 8, v2',
                    'v_mul_u32_u24 v3, 5, v2', 'v_sub_u32 v1, v1, v3', 'v_lshlrev_b32 v1, 10, v1', 'v_mul_u32_u24 v2, 245760, v2', 'v_add_u32 v1, v1, v2',
                    f'v_and_b32 v2, 7, {vL}', 'v_lshl_add_u32 v1, v2, 5, v1']
            ops += ['s_lshr_b32 s88, s86, 2', 's_mul_i32 s87, s88, 5120', 's_and_b32 s88, s86, 3', 's_lshl_b32 s88, s88, 8', 's_add_u32 s87, s87, s88',
                    f's_add_u32 s87, s87, {WD_OFF}']
            nun = 960
        ops += [f's_cmp_lt_u32 s84, {nun}', 's_cselect_b32 s87, s87, 0x40000000']
        perms = []
        for d in range(4):
            perms.append(f'v_perm_b32 {vr(RPO+d)}, {vr(RP+2*d+1)}, {vr(RP+2*d)}, s89')
            perms.append(f'v_perm_b32 {vr(RPO+4+d)}, {vr(RP+2*d+1)}, {vr(RP+2*d)}, s90')
        stores = [f'buffer_store_dwordx4 {vr(RPO,4)}, v1, {WS}, s87 offen sc1', f'buffer_store_dwordx4 {vr(RPO+4,4)}, v1, {WS}, s87 offen offset:16 sc1']
        return ops, perms, stores

def phase1(a, o):
    a.comment('================ phase 1')
    a.reset_counts()
    wdma_setup(a, vWD)
    a(f'v_lshlrev_b32 {vT16}, 4, {vL}')
    a(f'v_add_u32 {vT16b}, {TILE_B}, {vT16}')
    srd(a, 44, G.P_WQKV, D*3*D*2)
    a(f'v_lshrrev_b32 v1, 4, {vL}')
    a(f'v_and_b32 v2, 15, {vL}')
    a('v_lshrrev_b32 v3, 2, v2')
    a('v_and_b32 v4, 3, v2')
    a('v_lshlrev_b32 v5, 3, v1')
    a('v_lshl_add_u32 v5, v3, 1, v5')
    a('v_mul_u32_u24 v5, 240, v5')
    a(f'v_lshl_add_u32 {vAC}, v4, 3, v5')
    a('v_mul_u32_u24 v6, 40, v4')
    a('v_add_u32 v6, 32, v6')
    a(f'v_add_u32 {vAX}, v6, v5')
    a('v_and_b32 v6, 1, v4')
    a('v_mul_u32_u24 v6, 40, v6')
    a('v_add_u32 v6, 192, v6')
    a(f'v_add_u32 {vAV}, v6, v5')
    a(f'v_lshlrev_b32 {vGS}, 5, v1')
    a(f'v_add_u32 {vGS}, {L_G1}, {vGS}')
    a(f's_mul_i32 s11, {sW}, 38400')
    a(f'v_add_u32 {vHC}, s11, {vAC}'); a(f'v_add_u32 {vHX}, s11, {vAX}'); a(f'v_add_u32 {vHV}, s11, {vAV}')
    a(f's_mul_i32 s11, {sW}, 640')
    a(f'v_add_u32 {vHG}, s11, {vGS}')
    a(f's_lshl_b32 s11, {sSG}, 3'); a(f's_lshl_b32 s12, {sW}, 1'); a('s_add_u32 s11, s11, s12')
    a(f's_mul_i32 s11, s11, {TILE_B}'); a(f's_add_u32 s78, s11, {XH_OFF}')
    a(f's_lshl_b32 s77, {sROT}, 12')
    xt = {}
    def xload(i):
        a('s_add_u32 s79, s78, s77')
        xt[(i, 0)] = a.vmem(f'buffer_load_dwordx4 {vr(xr(i,0),4)}, {vT16}, {WS}, s79 offen sc1')
        xt[(i, 1)] = a.vmem(f'buffer_load_dwordx4 {vr(xr(i,1),4)}, {vT16b}, {WS}, s79 offen sc1')
        a('s_add_u32 s77, s77, 1024'); a(f's_cmp_eq_u32 s77, {TILE_B}'); a('s_cselect_b32 s77, 0, s77')
    for i in range(DEPTH): xload(i)
    a(f's_lshl_b32 s11, {sSG}, 3'); a('s_sub_u32 s12, s11, 1'); a(f's_cmp_eq_u32 {sSG}, 0'); a('s_cselect_b32 s11, 0, s12')
    a(f's_mul_i32 s11, s11, {TILE_B}'); a(f's_add_u32 s80, s11, {XH_OFF}')
    a(f's_mul_i32 s11, {sW}, 5'); a(f's_lshl_b32 s12, {sROT}, 2'); a('s_add_u32 s11, s11, s12')
    ht = []
    for u in range(5):
        a('s_sub_u32 s12, s11, 20'); a('s_cmp_ge_u32 s11, 20'); a('s_cselect_b32 s11, s12, s11')
        a('s_lshl_b32 s13, s11, 10'); a('s_add_u32 s13, s13, s80')
        ht.append(a.vmem(f'buffer_load_dwordx4 {vr(HRAW+4*u,4)}, {vT16}, {WS}, s13 offen sc1'))
        a('s_add_u32 s11, s11, 1')
    rp = Repack(a); rp.setup()
    a('s_mov_b32 s89, 0x05040100'); a('s_mov_b32 s90, 0x07060302')
    a(f's_mul_i32 s81, {sW}, 7680')
    a(f's_mul_i32 s82, {sW}, {32*3840}')
    wt = {}
    def wread(t, i, hi):
        v, off = waddr(t, i, hi)
        wt[(t, i, hi)] = a.lds(f'ds_read_b64_tr_b16 {ar(WF+4*t+2*hi,2)}, {v} offset:{off}')
    gt = {}
    for i in (0, 1):
        for op in gs_reads(a, i): gt[i] = a.lds(op)
    for t in range(8):
        wread(t, 0, 0); wread(t, 0, 1)
    a.wait_vm(xt[(0, 1)]); a.wait_lg(gt[0])
    for T in (0, 1):
        for op in transform_ops(xr(0, T), hb(0, T), gs(0)): a(op)
    xload(DEPTH)
    stamp(a, 5)
    dma_tok = {}
    rp_state = {}
    for i in range(20):
        nxt = i+1 < 20
        if i == 3 or (i % 4 == 3 and (i+1)//4 >= o.npre and nxt):
            g = (i+1)//4
            if g in dma_tok: a.wait_vm(dma_tok[g])
            a('s_barrier')
        if i in (7, 15):
            pass
        fill = []
        if nxt:
            fill = transform_ops(xr(i+1, 0), hb(i+1, 0), gs(i+1))+transform_ops(xr(i+1, 1), hb(i+1, 1), gs(i+1))
        extra = {k: [] for k in range(16)}
        gsr = gs_reads(a, i+2) if i+2 < 20 else []
        gi = o.npre+i//4
        if gi < 5:
            if i % 4 == 0:
                extra[1].append(('salu', lambda gi=gi: (wgroup_row0(a, gi, 's83'), a('s_add_u32 s83, s83, s82'))))
            for tt in (2*(i % 4), 2*(i % 4)+1):
                def dm(gi=gi, tt=tt):
                    a(f's_add_u32 m0, s81, {gi*30720+tt*960}')
                    a('s_mov_b32 exec_hi, 0x0fffffff')
                    t = a.vmem(f'buffer_load_dwordx4 {vWD}, {SA}, s83 offen lds')
                    a('s_mov_b32 exec_hi, -1')
                    a(f's_add_u32 s83, s83, {7680 if tt % 2 == 0 else 23040}')
                    dma_tok[gi] = t
                extra[3 if tt % 2 == 0 else 9].append(('vm', dm))
        for u in range(4):
            if i == 2+4*u:
                ops, loads = rp.unit_loads(u)
                extra[2].append(('salu', lambda ops=ops: [a(x) for x in ops]))
                for e, (ld, inc) in enumerate(loads):
                    def f(ld=ld, inc=inc, u=u):
                        rp_state[u] = a.vmem(ld)
                        if inc: a(inc)
                    extra[4+e].append(('vm', f))
            if i == 5+4*u:
                ops, perms, stores = rp.unit_stores(u)
                def g2(ops=ops, perms=perms, stores=stores, u=u):
                    for x in ops: a(x)
                    a.wait_vm(rp_state[u])
                    for x in perms: a(x)
                    for x in stores: rp_state[('st', u)] = a.vmem(x)
                extra[12].append(('vm', g2))
        fi = 0
        waited = False
        for k in range(16):
            t, T = k//2, k & 1
            if T == 0:
                a.wait_lg(wt[(t, i, 1)])
            c = '0' if i == 0 else vr(acc(T, t), 4)
            if t < 5: a(f'v_mfma_f32_16x16x32_bf16 {vr(acc(T,t),4)}, {ar(WF+4*t,4)}, {vr(hb(i,T),4)}, {c}')
            else:     a(f'v_mfma_f32_16x16x32_bf16 {vr(acc(T,t),4)}, {vr(hb(i,T),4)}, {ar(WF+4*t,4)}, {c}')
            if nxt:
                if k == 0 and (i+1) % 8 == 0:
                    for v in (vAC, vAX, vAV): a(f'v_add_u32 {v}, 61440, {v}')
                if T == 1: wread(t, i+1, 0)
                elif t > 0: wread(t-1, i+1, 1)
                if k == 15: wread(7, i+1, 1)
            if k < len(gsr)*2 and k % 2 == 0 and gsr:
                gt[i+2] = a.lds(gsr[k//2])
            if fill:
                if not waited:
                    a.wait_vm(xt[(i+1, 1)]); a.wait_lg(gt[i+1]); waited = True
                n = 2 if k % 2 == 0 else 1
                if k >= 14: n = len(fill)-fi if k == 15 else n
                for _ in range(n):
                    if fi < len(fill): a(fill[fi]); fi += 1
            for kind, f in extra[k]: f()
        if i+1+DEPTH < 20: xload(i+1+DEPTH)
    return_state = dict(ht=ht, rp_state=rp_state)
    stamp(a, 6)
    halo_and_attention(a, o, return_state)


HTILES = [2, 3, 4, 5, 6, 7]
L_EX = 102400
L_HP = 114688

def cross_op(a, op, v, t0, t1):
    for sw in ('v_permlane16_swap_b32', 'v_permlane32_swap_b32'):
        a(f'v_mov_b32 {t0}, {v}'); a(f'v_mov_b32 {t1}, {v}')
        a(f'{sw} {t0}, {t1}')
        a(f'{op} {v}, {t0}, {t1}')

def halo_and_attention(a, o, st):
    a.comment('---- halo tile (k,v columns only), K split over the four waves')
    hw = {}
    HWF = 0
    def hread(n, u):
        t = HTILES[n]
        for hi in (0, 1):
            v, off = waddr(t, u, hi, halo=True)
            hw[(n, u)] = a.lds(f'ds_read_b64_tr_b16 {ar(HWF+(u&1)*24+4*n+2*hi,2)}, {v} offset:{off}')
    hg = {}
    def hgs(u):
        for op in gs_reads(a, u, addr=vHG, rel=u, dst=gs(u)): hg[u] = a.lds(op)
    hgs(0)
    for n in range(6): hread(n, 0)
    for u in range(5):
        if u+1 < 5:
            hgs(u+1)
        a.wait_vm(st['ht'][u]); a.wait_lg(hg[u])
        for op in transform_ops(HRAW+4*u, HH, gs(u)): a(op)
        for n in range(6):
            t = HTILES[n]
            a.wait_lg(hw[(n, u)])
            c = '0' if u == 0 else vr(HACC+4*n, 4)
            wf = ar(HWF+(u & 1)*24+4*n, 4)
            if t < 5: a(f'v_mfma_f32_16x16x32_bf16 {vr(HACC+4*n,4)}, {wf}, {vr(HH,4)}, {c}')
            else:     a(f'v_mfma_f32_16x16x32_bf16 {vr(HACC+4*n,4)}, {vr(HH,4)}, {wf}, {c}')
            if u+1 < 5: hread(n, u+1)
    a.wait_all_vm()
    stamp(a, 7)
    a('s_barrier')
    a(f's_cmp_lg_u32 {sW}, 0')
    Ln = newlab('norf'); a(f's_cbranch_scc1 {Ln}')
    a('s_lshl_b32 s11, s2, 2'); a(f's_add_u32 s11, s11, {RFLAG_OFF}')
    a(f'v_mov_b32 v1, {sN}')
    set_exec(a, 1)
    a.vmem(f'buffer_store_dword v1, off, {WS}, s11 sc1', optional=True)
    set_exec(a, (1 << 64)-1)
    a.label(Ln)
    Q = 108
    K = 124
    V = 148
    SS = 172
    PF = 204
    OO = 220
    ONE = 236
    vNEG = 'v240'; t0, t1 = 'v241', 'v242'
    def q(T, h): return Q+(T*2+h)*4
    def kf(U, h): return K+(U*2+h)*4
    def vf(T, x): return V+(T*3+x)*4
    def ss(T, h): return SS+(T*2+h)*8
    def pf(T, h): return PF+(T*2+h)*4
    a(f's_mul_i32 s11, {sW}, 6144'); a(f's_add_u32 s11, s11, {L_HP}')
    a(f'v_add_u32 v1, s11, {vT16}')
    for n in range(6): a.lds(f'ds_write_b128 v1, {vr(HACC+4*n,4)} offset:{1024*n}')
    a(f'v_and_b32 v2, 15, {vL}')
    a(f'v_lshrrev_b32 v3, 4, {vL}')
    a('v_lshlrev_b32 v4, 2, v3')
    a('v_sub_u32 v4, v2, v4')
    for r in range(4):
        a(f'v_subrev_u32 v5, {r}, v4')
        a('v_and_b32 v6, 0xfffffff1, v5')
        a(f'v_cmp_eq_u32 s[{56+2*r}:{57+2*r}], 0, v6')
        a('v_add_u32 v5, 16, v5')
        a('v_and_b32 v6, 0xfffffff1, v5')
        a(f'v_cmp_eq_u32 s[{64+2*r}:{65+2*r}], 0, v6')
    a(f's_or_b32 s11, {sSG}, {sW}'); a('s_cmp_eq_u32 s11, 0')
    for r in range(4): a(f's_cselect_b64 s[{92+2*r if r < 3 else 76}:{93+2*r if r < 3 else 77}], 0, s[{64+2*r}:{65+2*r}]')
    mprev0 = ['s[92:93]', 's[94:95]', 's[96:97]', 's[76:77]']
    mprev1 = [f's[{64+2*r}:{65+2*r}]' for r in range(4)]
    mcur = [f's[{56+2*r}:{57+2*r}]' for r in range(4)]
    a('v_cmp_eq_u32 s[78:79], 0, v3')
    a('v_cmp_eq_u32 s[82:83], 1, v3')
    a(f'v_mov_b32 {vNEG}, 0xf149f2ca')
    for r in range(4): a(f'v_mov_b32 {vr(ONE+r)}, 0x3f803f80')
    def pk(dst, src):
        a(f'v_cvt_pk_bf16_f32 {vr(dst)}, {vr(src)}, {vr(src+1)}')
        a(f'v_cvt_pk_bf16_f32 {vr(dst+1)}, {vr(src+2)}, {vr(src+3)}')
    def kpack(U, ka, kb, c):
        pk(kf(U, 0), ka); pk(kf(U, 1), kb)
        for d in (0, 1):
            a(f'v_cvt_pk_bf16_f32 {t0}, {vr(c+2*d)}, {vr(c+2*d+1)}')
            a(f'v_mov_b32 {vr(kf(U,0)+2+d)}, {t0}')
            a(f'v_permlane32_swap_b32 {t0}, {vr(kf(U,0)+2+d)}')
            a(f'v_mov_b32 {vr(kf(U,1)+2+d)}, {vr(kf(U,0)+2+d)}')
    for T in (0, 1):
        pk(q(T, 0), acc(T, 0)); pk(q(T, 1), acc(T, 1))
        for d in (0, 1):
            a(f'v_cvt_pk_bf16_f32 {t0}, {vr(acc(T,4)+2*d)}, {vr(acc(T,4)+2*d+1)}')
            a(f'v_cndmask_b32 {vr(q(T,0)+2+d)}, 0, {t0}, s[78:79]')
            a(f'v_cndmask_b32 {vr(q(T,1)+2+d)}, 0, {t0}, s[82:83]')
        kpack(1+T, acc(T, 2), acc(T, 3), acc(T, 4))
    for x in range(3):
        pk(vf(0, x)+2, acc(0, 5+x)); pk(vf(1, x), acc(0, 5+x)); pk(vf(1, x)+2, acc(1, 5+x))
    a(f's_mul_i32 s11, {sW}, 3584'); a(f's_add_u32 s11, s11, {L_EX}')
    a(f'v_add_u32 v1, s11, {vT16}')
    a(f'v_lshlrev_b32 v5, 3, {vL}'); a('v_add_u32 v5, s11, v5')
    Lskip = newlab('noex')
    a(f's_cmp_eq_u32 {sW}, 3'); a(f's_cbranch_scc1 {Lskip}')
    a(f'ds_write_b128 v1, {vr(kf(2,0),4)}')
    a(f'ds_write_b128 v1, {vr(kf(2,1),4)} offset:1024')
    for x in range(3): a(f'ds_write_b64 v5, {vr(vf(1,x)+2,2)} offset:{2048+512*x}')
    a.label(Lskip)
    a.wait_all_lg()
    a('s_barrier')
    stamp(a, 8)
    Lw0 = newlab('w0'); Lj = newlab('prevj')
    a(f's_cmp_eq_u32 {sW}, 0'); a(f's_cbranch_scc1 {Lw0}')
    a('v_subrev_u32 v1, 3584, v1'); a('v_subrev_u32 v5, 3584, v5')
    a(f'ds_read_b128 {vr(kf(0,0),4)}, v1')
    a(f'ds_read_b128 {vr(kf(0,1),4)}, v1 offset:1024')
    for x in range(3): a(f'ds_read_b64 {vr(vf(0,x),2)}, v5 offset:{2048+512*x}')
    a(f's_branch {Lj}')
    a.label(Lw0)
    a(f'v_add_u32 v1, {L_HP}, {vT16}')
    R = 172
    for n in range(6):
        for w in range(1, 4):
            a(f'ds_read_b128 {vr(R+((n*3+w-1)%12)*4,4)}, v1 offset:{6144*w+1024*n}')
        if n % 2 == 1:
            pass
        if n % 4 == 3 or n == 5:
            n0 = n-3 if n % 4 == 3 else n-1
            a('s_waitcnt lgkmcnt(0)')
            for m_ in range(n0, n+1):
                for w in range(3):
                    b = R+((m_*3+w) % 12)*4
                    for r in range(4): a(f'v_add_f32 {vr(HACC+4*m_+r)}, {vr(HACC+4*m_+r)}, {vr(b+r)}')
    kpack(0, HACC+0, HACC+4, HACC+8)
    for x in range(3): pk(vf(0, x), HACC+12+4*x)
    a.label(Lj)
    a('s_waitcnt lgkmcnt(0)'); a.lg = []
    for T in (1, 0):
        for h in (0, 1):
            a(f'v_mfma_f32_16x16x32_bf16 {vr(ss(T,h),4)}, {vr(kf(T,h),4)}, {vr(q(T,h),4)}, 0')
            a(f'v_mfma_f32_16x16x32_bf16 {vr(ss(T,h)+4,4)}, {vr(kf(T+1,h),4)}, {vr(q(T,h),4)}, 0')
    a(f's_mov_b32 s11, {hex(f2u((DH**-0.5)*1.4426950408889634))}')
    combos = [(1, 0), (1, 1), (0, 0), (0, 1)]
    MX = 244
    for ci, (T, h) in enumerate(combos):
        mp = mprev0 if T == 0 else mprev1
        for r in range(4):
            a(f'v_cndmask_b32 {vr(ss(T,h)+r)}, {vNEG}, {vr(ss(T,h)+r)}, {mp[r]}')
            a(f'v_cndmask_b32 {vr(ss(T,h)+4+r)}, {vNEG}, {vr(ss(T,h)+4+r)}, {mcur[r]}')
        b = ss(T, h); m = vr(MX+ci)
        a(f'v_max3_f32 {m}, {vr(b)}, {vr(b+1)}, {vr(b+2)}')
        a(f'v_max3_f32 {m}, {m}, {vr(b+3)}, {vr(b+4)}')
        a(f'v_max3_f32 {m}, {m}, {vr(b+5)}, {vr(b+6)}')
        a(f'v_max_f32 {m}, {m}, {vr(b+7)}')
    for sw in ('v_permlane16_swap_b32', 'v_permlane32_swap_b32'):
        for ci in range(4):
            a(f'v_mov_b32 {vr(OO+2*ci)}, {vr(MX+ci)}'); a(f'v_mov_b32 {vr(OO+2*ci+1)}, {vr(MX+ci)}')
        for ci in range(4): a(f'{sw} {vr(OO+2*ci)}, {vr(OO+2*ci+1)}')
        for ci in range(4): a(f'v_max_f32 {vr(MX+ci)}, {vr(OO+2*ci)}, {vr(OO+2*ci+1)}')
    for ci, (T, h) in enumerate(combos):
        b = ss(T, h); m = vr(MX+ci)
        a(f'v_mul_f32 {m}, s11, {m}')
        for r in range(8): a(f'v_fma_f32 {vr(b+r)}, {vr(b+r)}, s11, -{m}')
        for r in range(8): a(f'v_exp_f32 {vr(b+r)}, {vr(b+r)}')
        for d in range(4): a(f'v_cvt_pk_bf16_f32 {vr(pf(T,h)+d)}, {vr(b+2*d)}, {vr(b+2*d+1)}')
    OB = {1: 172, 0: 20}
    for T in (1, 0):
        b = OB[T]
        a(f'v_mfma_f32_16x16x32_bf16 {vr(b,4)}, {vr(ONE,4)}, {vr(pf(T,0),4)}, 0')
        a(f'v_mfma_f32_16x16x32_bf16 {vr(b+4,4)}, {vr(ONE,4)}, {vr(pf(T,1),4)}, 0')
        a(f'v_mfma_f32_16x16x32_bf16 {vr(b+8,4)}, {vr(vf(T,0),4)}, {vr(pf(T,0),4)}, 0')
        a(f'v_mfma_f32_16x16x32_bf16 {vr(b+12,4)}, {vr(vf(T,1),4)}, {vr(pf(T,1),4)}, 0')
        a(f'v_mfma_f32_16x16x32_bf16 {vr(b+16,4)}, {vr(vf(T,2),4)}, {vr(pf(T,0),4)}, 0')
        a(f'v_mfma_f32_16x16x32_bf16 {vr(b+20,4)}, {vr(vf(T,2),4)}, {vr(pf(T,1),4)}, 0')
    a(f'v_and_b32 v2, 15, {vL}'); a(f'v_lshrrev_b32 v3, 4, {vL}')
    a('v_lshlrev_b32 v2, 4, v2')
    a('v_lshrrev_b32 v4, 1, v3'); a('v_lshl_add_u32 v4, v4, 8, v2'); a('v_and_b32 v5, 1, v3'); a('v_lshl_add_u32 v4, v5, 3, v4')
    a('v_add_u32 v5, 5, v3'); a('v_lshrrev_b32 v6, 1, v5'); a('v_lshl_add_u32 v6, v6, 8, v2'); a('v_and_b32 v5, 1, v5'); a('v_lshl_add_u32 v6, v5, 3, v6')
    a('v_mul_u32_u24 v7, 520, v3'); a('v_add_u32 v7, 512, v7'); a('v_add_u32 v7, v7, v2')
    a(f's_lshl_b32 s11, {sSG}, 3'); a(f's_lshl_b32 s12, {sW}, 1'); a('s_add_u32 s11, s11, s12')
    a(f's_mul_i32 s11, s11, {TILE_B}'); a(f's_mul_i32 s12, {sM}, 1280'); a('s_add_u32 s11, s11, s12')
    a(f's_add_u32 s12, s11, {O_OFF}'); a(f's_add_u32 s13, s12, {TILE_B}')
    last = None
    for T in (1, 0):
        b = OB[T]; so = 's13' if T == 1 else 's12'
        a(f'v_rcp_f32 {vr(b)}, {vr(b)}'); a(f'v_rcp_f32 {vr(b+4)}, {vr(b+4)}')
        for r in range(4):
            a(f'v_mul_f32 {vr(b+8+r)}, {vr(b+8+r)}, {vr(b)}')
            a(f'v_mul_f32 {vr(b+12+r)}, {vr(b+12+r)}, {vr(b+4)}')
            a(f'v_cndmask_b32 {vr(b+16+r)}, {vr(b+20+r)}, {vr(b+16+r)}, s[78:79]')
        a(f'v_cndmask_b32 {vr(b+1)}, {vr(b+4)}, {vr(b)}, s[78:79]')
        for r in range(4): a(f'v_mul_f32 {vr(b+16+r)}, {vr(b+16+r)}, {vr(b+1)}')
        pk(b+8, b+8); pk(b+12, b+12); pk(b+16, b+16)
        a.vmem(f'buffer_store_dwordx2 {vr(b+8,2)}, v4, {WS}, {so} offen sc1')
        a.vmem(f'buffer_store_dwordx2 {vr(b+12,2)}, v6, {WS}, {so} offen sc1')
        a('s_mov_b32 exec_hi, 0')
        last = a.vmem(f'buffer_store_dwordx2 {vr(b+16,2)}, v7, {WS}, {so} offen sc1')
        a('s_mov_b32 exec_hi, -1')
    stamp(a, 9)
    a.wait_all_vm()
    flag_store(a, 3)
    stamp(a, 10)
```

```python
from layout import *
import gen as G
from gen import vr, ar, stamp, set_exec, flag_store, poll_flags, WS, SA, SB, SC_, sW, sSG, sM, sN, sROT, sFL, vL, f2u, srd, newlab

X1A = 240

def multi_gather(a, o, colbases, V):
    L = newlab('mg'); Ld = newlab('mgd')
    set_exec(a, (1 << 40)-1)
    a(f'v_lshlrev_b32 v5, 4, {vL}')
    a(f's_mov_b32 s73, {o.spin}')
    a.label(L)
    for n, cb in enumerate(colbases):
        a(f's_lshl_b32 s12, {cb}, 3'); a(f's_add_u32 s12, s12, {GRAN_OFF}')
        for kq in range(4):
            a(f'buffer_load_dwordx4 {vr(V+16*n+4*kq,4)}, v5, {WS}, s12 offen sc1')
            if kq < 3: a(f's_add_u32 s12, s12, {3840*8}')
    a('s_waitcnt vmcnt(0)'); a.vm = []
    first = True
    for n in range(len(colbases)):
        for kq in range(4):
            b = V+16*n+4*kq
            if first:
                a(f'v_max_u32 v6, {vr(b+1)}, {vr(b+3)}'); a(f'v_min_u32 v7, {vr(b+1)}, {vr(b+3)}'); first = False
            else:
                a(f'v_max3_u32 v6, v6, {vr(b+1)}, {vr(b+3)}'); a(f'v_min3_u32 v7, v7, {vr(b+1)}, {vr(b+3)}')
    a(f'v_cmp_ne_u32 vcc, {sN}, v6'); a(f'v_cmp_ne_u32 s[74:75], {sN}, v7'); a('s_or_b64 vcc, vcc, s[74:75]')
    a('s_sub_u32 s73, s73, 1'); a('s_cmp_eq_u32 s73, 0'); a(f's_cbranch_scc1 {Ld}'); a(f's_cbranch_vccnz {L}')
    a.label(Ld)
    for n in range(len(colbases)):
        b = V+16*n
        for h in (0, 2):
            a(f'v_add_f32 {vr(b+h)}, {vr(b+h)}, {vr(b+4+h)}'); a(f'v_add_f32 {vr(b+8+h)}, {vr(b+8+h)}, {vr(b+12+h)}')
            a(f'v_add_f32 {vr(b+h)}, {vr(b+h)}, {vr(b+8+h)}')
        a(f'v_cvt_pk_bf16_f32 {vr(b+1)}, {vr(b)}, {vr(b+2)}')

def plus_one(a, p, cond=None):
    a(f'v_lshlrev_b32 v6, 16, {vr(p)}'); a(f'v_and_b32 v7, 0xffff0000, {vr(p)}')
    a('v_add_f32 v6, 1.0, v6'); a('v_add_f32 v7, 1.0, v7')
    a(f'v_cvt_pk_bf16_f32 v6, v6, v7')
    if cond: a(f'v_cndmask_b32 {vr(p)}, {vr(p)}, v6, {cond}')
    else: a(f'v_mov_b32 {vr(p)}, v6')

def phase2(a, o):
    a.comment('================ phase 2')
    a.reset_counts()
    sCB, sRB = 's80', 's81'
    a(f's_and_b32 {sCB}, {sM}, 7'); a(f's_lshr_b32 {sRB}, {sM}, 3')
    L = newlab('rp'); Ld = newlab('rpd')
    a(f'v_lshlrev_b32 v8, 4, {vL}')
    a(f's_mov_b32 s73, {o.spin}'); a(f's_mov_b32 s12, {RFLAG_OFF}')
    a.label(L)
    a(f'buffer_load_dwordx4 v[12:15], v8, {WS}, s12 offen sc1')
    a('s_waitcnt vmcnt(0)')
    a('v_max_u32 v6, v12, v13'); a('v_max3_u32 v6, v6, v14, v15'); a('v_min_u32 v7, v12, v13'); a('v_min3_u32 v7, v7, v14, v15')
    a(f'v_cmp_ne_u32 vcc, {sN}, v6'); a(f'v_cmp_ne_u32 s[74:75], {sN}, v7'); a('s_or_b64 vcc, vcc, s[74:75]')
    a('s_sub_u32 s73, s73, 1'); a('s_cmp_eq_u32 s73, 0'); a(f's_cbranch_scc1 {Ld}'); a(f's_cbranch_vccnz {L}')
    a.label(Ld)
    Lz = newlab('noz')
    a(f's_or_b32 s11, s2, {sW}'); a('s_cmp_lg_u32 s11, 0'); a(f's_cbranch_scc1 {Lz}')
    a(f'v_mov_b32 v1, {sN}'); set_exec(a, 1)
    a.vmem(f'buffer_store_dword v1, off, {WS}, 0 sc1', optional=True)
    set_exec(a, (1 << 64)-1)
    a.label(Lz)
    stamp(a, 11)
    a(f's_mul_i32 s12, {sCB}, 102400'); a(f's_mul_i32 s13, {sW}, 25600'); a('s_add_u32 s12, s12, s13'); a(f's_add_u32 s12, s12, {WO_OFF}')
    tw = None
    for t in range(25):
        a(f's_add_u32 m0, s13, {1024*t}')
        tw = a.vmem(f'buffer_load_dwordx4 v8, {WS}, s12 offen sc1 lds')
        if t < 24: a('s_add_u32 s12, s12, 1024')
    a('s_mul_i32 s82, s2, 683'); a('s_lshr_b32 s82, s82, 16')
    a('s_mul_i32 s11, s82, 96'); a('s_sub_u32 s11, s2, s11')
    a('s_mul_i32 s83, s11, 2731'); a('s_lshr_b32 s83, s83, 16')
    a('s_mul_i32 s12, s83, 24'); a('s_sub_u32 s84, s11, s12')
    a('s_cmp_eq_u32 s82, 0')
    a(f's_cselect_b32 s44, s{G.P_WG}, s{G.P_WU}'); a(f's_cselect_b32 s45, s{G.P_WG+1}, s{G.P_WU+1}')
    a(f's_mov_b32 s46, {D*F*2}'); a('s_mov_b32 s47, 0x20000')
    a(f'v_lshrrev_b32 v9, 3, {vL}'); a(f'v_and_b32 v10, 7, {vL}'); a('v_mul_u32_u24 v9, 3072, v9'); a('v_lshl_add_u32 v9, v10, 4, v9')
    a('s_mul_i32 s12, s83, 160'); a(f's_mul_i32 s13, {sW}, 40'); a('s_add_u32 s12, s12, s13'); a('s_mul_i32 s12, s12, 3072')
    a('s_lshl_b32 s13, s84, 7'); a('s_add_u32 s12, s12, s13')
    a('s_cmp_lt_u32 s2, 192'); a('s_cselect_b32 s12, s12, 0x40000000')
    a(f's_mul_i32 s13, {sW}, 5120')
    for t in range(5):
        a(f's_add_u32 m0, s13, {L_UTSTG+1024*t}')
        a.vmem(f'buffer_load_dwordx4 v9, {SA}, s12 offen lds')
        if t < 4: a(f's_add_u32 s12, s12, {8*3072}')
    srd(a, 48, G.P_X, S*D*2)
    a(f's_lshl_b32 s11, {sSG}, 7'); a(f's_lshl_b32 s12, {sRB}, 6'); a('s_add_u32 s11, s11, s12'); a(f's_lshl_b32 s12, {sW}, 4'); a('s_add_u32 s85, s11, s12')
    a(f's_mul_i32 s11, s85, 1280'); a(f's_mul_i32 s12, {sCB}, 160'); a('s_add_u32 s86, s11, s12')
    a(f'v_and_b32 v2, 15, {vL}'); a(f'v_lshrrev_b32 v3, 4, {vL}')
    a('v_mul_u32_u24 v11, 1280, v2'); a('v_lshl_add_u32 v11, v3, 3, v11')
    XR = 16
    for nt in range(5): a.vmem(f'buffer_load_dwordx2 {vr(XR+2*nt,2)}, v11, {SB}, s86 offen offset:{32*nt}')
    a(f's_mul_i32 s11, {sCB}, 80')
    a('s_movk_i32 s87, 3200'); a(f's_cmp_eq_u32 {sW}, 0'); a('s_cselect_b32 s87, 1280, s87'); a(f's_cmp_eq_u32 {sW}, 1'); a('s_cselect_b32 s87, 2560, s87'); a('s_add_u32 s87, s87, s11')
    a('s_movk_i32 s88, 1920'); a(f's_cmp_lt_u32 {sW}, 2'); a('s_cselect_b32 s88, 2560, s88'); a(f's_and_b32 s11, {sW}, 1'); a('s_mul_i32 s11, s11, 80'); a('s_add_u32 s88, s88, s11')
    a('s_mul_i32 s11, s83, 160'); a('s_cmp_lt_u32 s2, 192'); a('s_cselect_b32 s11, s11, 0'); a('s_add_u32 s88, s88, s11')
    V = 32
    multi_gather(a, o, ['s87', 's88'], V)
    a(f's_cmp_eq_u32 {sW}, 1'); a('s_cselect_b64 s[74:75], -1, 0')
    plus_one(a, V+1, 's[74:75]')
    a(f's_cmp_lt_u32 {sW}, 2'); a('s_cselect_b64 s[74:75], -1, 0')
    plus_one(a, V+17, 's[74:75]')
    a(f'v_lshlrev_b32 {vr(V+2)}, 16, {vr(V+1)}'); a(f'v_and_b32 {vr(V+3)}, 0xffff0000, {vr(V+1)}')
    a(f's_min_u32 s11, {sW}, 2'); a('s_mul_i32 s11, s11, 320'); a(f's_add_u32 s11, s11, {L_VEC}')
    a(f'v_lshlrev_b32 v5, 3, {vL}'); a('v_add_u32 v5, s11, v5')
    a.lds(f'ds_write_b64 v5, {vr(V+2,2)}')
    a(f's_lshr_b32 s11, {sW}, 1'); a('s_mul_i32 s11, s11, 384'); a(f's_and_b32 s12, {sW}, 1'); a('s_mul_i32 s12, s12, 160'); a('s_add_u32 s11, s11, s12'); a(f's_add_u32 s11, s11, {L_VG}')
    a(f'v_lshlrev_b32 v5, 2, {vL}'); a('v_add_u32 v5, s11, v5')
    a.lds(f'ds_write_b32 v5, {vr(V+17)}')
    set_exec(a, (1 << 64)-1)
    a.wait_all_lg()
    stamp(a, 12)
    a(f's_lshl_b32 s11, {sRB}, 2'); a(f's_add_u32 s11, s11, {sW}'); a('s_lshr_b32 s12, s11, 1')
    a(f's_lshl_b32 s13, {sSG}, 6'); a('s_add_u32 s12, s12, s13')
    a(f'v_lshl_add_u32 v5, {vL}, 2, s12'); a('v_lshlrev_b32 v5, 7, v5'); a(f'v_add_u32 v5, {FLAG_OFF}, v5')
    poll_flags(a, 'v5', 16, 3, 'v6')
    stamp(a, 13)
    a(f's_lshl_b32 s13, {sSG}, 3'); a('s_add_u32 s87, s13, s11')
    a(f's_mul_i32 s12, s87, {TILE_B}'); a(f's_add_u32 s12, s12, {O_OFF}')
    ot = []
    for s in range(20):
        ot.append(a.vmem(f'buffer_load_dwordx4 {ar(4*s,4)}, v8, {WS}, s12 offen offset:{1024*(s%4)} sc1'))
        if s % 4 == 3 and s < 19: a('s_add_u32 s12, s12, 4096')
    a('s_barrier')
    a(f'v_and_b32 v2, 15, {vL}'); a(f'v_lshrrev_b32 v3, 4, {vL}')
    a('v_lshrrev_b32 v6, 2, v2'); a('v_lshl_add_u32 v6, v3, 3, v6'); a('v_lshlrev_b32 v6, 7, v6'); a('v_and_b32 v7, 3, v2'); a('v_lshl_add_u32 v6, v7, 3, v6')
    a(f's_lshl_b32 s11, {sW}, 5'); a(f's_add_u32 s11, s11, {L_UTSTG}'); a('v_add_u32 v6, s11, v6')
    a('v_lshrrev_b32 v7, 3, v2'); a('v_mul_u32_u24 v7, 384, v7'); a('v_lshl_add_u32 v7, v3, 4, v7'); a(f'v_add_u32 v7, {L_VG}, v7')
    UA = 64; WF = 72; VF = 112
    tk = []
    for s in range(5):
        a.lds(f'ds_read_b128 {vr(VF+4*s,4)}, v7 offset:{64*s}')
        a.lds(f'ds_read_b64_tr_b16 {vr(WF+4*s,2)}, v6 offset:{4096*s}')
        tk.append(a.lds(f'ds_read_b64_tr_b16 {vr(WF+4*s+2,2)}, v6 offset:{4096*s+512}'))
    for s in range(5):
        a.wait_lg(tk[s])
        a(f'v_mfma_f32_16x16x32_bf16 {vr(UA,4)}, {vr(WF+4*s,4)}, {vr(VF+4*s,4)}, {"0" if s == 0 else vr(UA,4)}')
    a('s_lshl_b32 s11, s83, 1'); a('s_add_u32 s11, s11, s82'); a('s_mul_i32 s11, s11, 3072'); a('s_lshl_b32 s12, s84, 6'); a('s_add_u32 s11, s11, s12')
    a(f's_lshl_b32 s12, {sW}, 4'); a('s_add_u32 s11, s11, s12'); a('s_lshl_b32 s11, s11, 2'); a(f's_add_u32 s11, s11, {UT_OFF}')
    a('s_cmp_lt_u32 s2, 192'); a('s_cselect_b32 s11, s11, 0x40000000')
    a('v_lshrrev_b32 v7, 3, v2'); a('v_mul_u32_u24 v7, 6144, v7'); a('v_lshl_add_u32 v7, v3, 4, v7')
    set_exec(a, 0x0101010101010101)
    a.vmem(f'buffer_store_dwordx4 {vr(UA,4)}, v7, {WS}, s11 offen sc1')
    set_exec(a, (1 << 64)-1)
    ACC = 64; WF = 0
    WB = 128
    a(f'v_add_u32 v9, 61440, v8')
    def waddr(nt, s):
        off = nt*20480+s*1024
        return ('v8', off) if off < 61440 else ('v9', off-61440)
    wt = {}
    seq = [(s, nt) for s in range(20) for nt in range(5)]
    def rd(idx):
        s, nt = seq[idx]; v, off = waddr(nt, s)
        wt[idx] = a.lds(f'ds_read_b128 {vr(WB+4*(idx%10),4)}, {v} offset:{off}')
    for idx in range(9): rd(idx)
    for idx, (s, nt) in enumerate(seq):
        if nt == 0: a.wait_vm(ot[s])
        a.wait_lg(wt[idx])
        a(f'v_mfma_f32_16x16x32_bf16 {vr(ACC+4*nt,4)}, {vr(WB+4*(idx%10),4)}, {ar(4*s,4)}, {"0" if s == 0 else vr(ACC+4*nt,4)}')
        if idx+9 < len(seq): rd(idx+9)
    stamp(a, 14)
    a(f'v_lshrrev_b32 v3, 4, {vL}'); a('v_lshlrev_b32 v4, 4, v3'); a(f'v_add_u32 v4, {L_VEC}, v4')
    GA = 32; G2 = 96
    tg = None
    for nt in range(5):
        a.lds(f'ds_read_b128 {vr(GA+4*nt,4)}, v4 offset:{64*nt}')
        tg = a.lds(f'ds_read_b128 {vr(G2+4*nt,4)}, v4 offset:{320+64*nt}')
    a('s_barrier')
    a.wait_lg(tg)
    XF = 128
    a('s_mov_b32 s11, 0xffff0000')
    for nt in range(5):
        for d in range(2):
            a(f'v_lshlrev_b32 {vr(XF+4*nt+2*d)}, 16, {vr(XR+2*nt+d)}'); a(f'v_and_b32 {vr(XF+4*nt+2*d+1)}, s11, {vr(XR+2*nt+d)}')
    for i in range(20): a(f'v_fmac_f32 {vr(XF+i)}, {vr(GA+i)}, {vr(ACC+i)}')
    PK = 148
    for i in range(10): a(f'v_cvt_pk_bf16_f32 {vr(PK+i)}, {vr(XF+2*i)}, {vr(XF+2*i+1)}')
    for i in range(10):
        a(f'v_accvgpr_write_b32 {ar(X1A+i)}, {vr(PK+i)}')
        a(f'v_lshlrev_b32 {vr(XF+2*i)}, 16, {vr(PK+i)}'); a(f'v_and_b32 {vr(XF+2*i+1)}, s11, {vr(PK+i)}')
    YP = 160
    for i in range(20): a(f'v_mul_f32 {vr(G2+i)}, {vr(G2+i)}, {vr(XF+i)}')
    for i in range(10): a(f'v_cvt_pk_bf16_f32 {vr(YP+i)}, {vr(G2+2*i)}, {vr(G2+2*i+1)}')
    a(f'v_mov_b32 {vr(YP+10)}, {vr(YP+8)}'); a(f'v_mov_b32 {vr(YP+11)}, {vr(YP+9)}')
    a(f'v_add_f32 v12, {vr(XF)}, {vr(XF+1)}'); a(f'v_mul_f32 v13, {vr(XF)}, {vr(XF)}'); a(f'v_fmac_f32 v13, {vr(XF+1)}, {vr(XF+1)}')
    for i in range(2, 20):
        a(f'v_add_f32 v12, v12, {vr(XF+i)}'); a(f'v_fmac_f32 v13, {vr(XF+i)}, {vr(XF+i)}')
    for p in range(3):
        for d in (0, 1): a(f'v_permlane16_swap_b32 {vr(YP+4*p+d)}, {vr(YP+4*p+2+d)}')
    a(f'v_and_b32 v2, 15, {vL}'); a(f'v_lshrrev_b32 v3, 4, {vL}')
    a('v_and_b32 v5, 1, v3'); a('v_lshlrev_b32 v5, 1, v5'); a('v_lshrrev_b32 v6, 1, v3'); a('v_add_u32 v5, v5, v6')
    a('v_lshlrev_b32 v5, 8, v5'); a('v_lshl_add_u32 v5, v2, 4, v5')
    a(f's_mul_i32 s12, s87, {TILE_B}'); a(f's_mul_i32 s13, {sCB}, 2560'); a('s_add_u32 s12, s12, s13'); a(f's_add_u32 s12, s12, {Y_OFF}')
    a.vmem(f'buffer_store_dwordx4 {vr(YP,4)}, v5, {WS}, s12 offen sc1')
    a.vmem(f'buffer_store_dwordx4 {vr(YP+4,4)}, v5, {WS}, s12 offen offset:1024 sc1')
    set_exec(a, 0x0000ffff0000ffff)
    a.vmem(f'buffer_store_dwordx4 {vr(YP+8,4)}, v5, {WS}, s12 offen offset:2048 sc1')
    set_exec(a, (1 << 64)-1)
    from gen_p1 import cross_op
    cross_op(a, 'v_add_f32', 'v12', 'v14', 'v15'); cross_op(a, 'v_add_f32', 'v13', 'v14', 'v15')
    a(f's_lshl_b32 s11, {sSG}, 1'); a(f's_add_u32 s11, s11, {sRB}'); a('s_lshl_b32 s11, s11, 3'); a(f's_add_u32 s11, s11, {sCB}'); a('s_lshl_b32 s11, s11, 6')
    a(f's_lshl_b32 s12, {sW}, 4'); a('s_add_u32 s11, s11, s12'); a('s_lshl_b32 s11, s11, 3'); a(f's_add_u32 s11, s11, {STAT_OFF}')
    a(f'v_lshlrev_b32 v5, 3, {vL}')
    set_exec(a, 0xffff)
    tl = a.vmem(f'buffer_store_dwordx2 v[12:13], v5, {WS}, s11 offen sc1')
    set_exec(a, (1 << 64)-1)
    stamp(a, 15)
    return tl
```

```python
from layout import *
import gen as G
from gen import vr, ar, stamp, set_exec, flag_store, poll_flags, WS, SA, SB, SC_, sW, sSG, sM, sN, sROT, sFL, vL, f2u, srd, newlab

def slot(p, s):
    if p == 0: return s
    if p == 1: return 40+s if s < 36 else s-36
    return 4+s
def wd_addr(s):
    if s < 12: return 90112+5120*s
    if s < 28: return 8192+5120*(s-12)
    if s == 28: return 0
    if s < 41: return 90112+5120*(s-29)
    return 8192+5120*(s-41)

vT16 = 'v8'
class Dma:
    def __init__(self, a, sbase): self.a = a; self.sbase = sbase
    def piece(self, lds_addr, src_off):
        a = self.a
        a(f's_add_u32 m0, s90, {lds_addr}')
        a(f's_add_u32 s91, {self.sbase}, {src_off}')
        return a.vmem(f'buffer_load_dwordx4 {vT16}, {WS}, s91 offen sc1 lds')

def gelu_ops(x, t, up, dst):
    k2 = -2.0*0.7978845608028654*1.4426950408889634
    return [f'v_mul_f32 {t}, {x}, {x}',
            f'v_fmamk_f32 {t}, {t}, {hex(f2u(k2*0.044715))}, v20',
            f'v_mul_f32 {t}, {t}, {x}',
            f'v_exp_f32 {t}, {t}',
            f'v_add_f32 {t}, 1.0, {t}',
            f'v_rcp_f32 {t}, {t}',
            f'v_mul_f32 {x}, {x}, {up}',
            f'v_mul_f32 {dst}, {x}, {t}']

def phase3(a, o, tl):
    a.comment('================ phase 3')
    a(f'v_lshlrev_b32 {vT16}, 4, {vL}')
    a(f's_lshl_b32 s90, {sW}, 10')
    a(f's_mul_i32 s88, {sM}, 245760'); a(f's_add_u32 s88, s88, {WGU_OFF}'); a('s_add_u32 s88, s88, s90')
    a(f's_and_b32 s80, {sM}, 7')
    a(f's_mul_i32 s89, s80, 245760'); a(f's_add_u32 s89, s89, {WD_OFF}'); a('s_add_u32 s89, s89, s90')
    dg = Dma(a, 's88'); dd = Dma(a, 's89')
    tpre = None
    for g4 in range(38):
        tpre = dg.piece(4096*g4, 4096*g4)
    a.wait_vm(tl)
    flag_store(a, 4)
    stamp(a, 16)
    a(f's_lshr_b32 s11, {sW}, 1'); a('s_lshl_b32 s11, s11, 5'); a(f's_lshl_b32 s12, {sW}, 1'); a('s_and_b32 s12, s12, 3'); a('s_add_u32 s11, s11, s12')
    a(f's_lshl_b32 s12, {sSG}, 6'); a('s_add_u32 s11, s11, s12')
    a(f'v_lshrrev_b32 v5, 1, {vL}'); a('v_lshlrev_b32 v5, 2, v5'); a(f'v_and_b32 v6, 1, {vL}'); a('v_add_u32 v5, v5, v6'); a('v_add_u32 v5, s11, v5')
    a('v_lshlrev_b32 v5, 7, v5'); a(f'v_add_u32 v5, {FLAG_OFF}, v5')
    poll_flags(a, 'v5', 16, 4, 'v6')
    stamp(a, 17)
    a(f'v_and_b32 v2, 15, {vL}'); a(f'v_bfe_u32 v3, {vL}, 4, 1'); a(f'v_lshrrev_b32 v4, 5, {vL}')
    a(f'v_mul_u32_u24 v9, {TILE_B}, v3'); a('v_lshl_add_u32 v9, v4, 8, v9'); a('v_lshl_add_u32 v9, v2, 4, v9')
    a(f's_lshl_b32 s11, {sSG}, 3'); a(f's_lshl_b32 s12, {sW}, 1'); a('s_add_u32 s87, s11, s12')
    a(f's_mul_i32 s12, s87, {TILE_B}'); a(f's_add_u32 s12, s12, {Y_OFF}')
    yt = []
    for s in range(40):
        yt.append(a.vmem(f'buffer_load_dwordx4 {ar(4*s,4)}, v9, {WS}, s12 offen offset:{512*(s%8)} sc1'))
        if s % 8 == 7 and s < 39: a('s_add_u32 s12, s12, 4096')
    a(f's_lshl_b32 s11, {sSG}, 1'); a(f's_lshr_b32 s12, {sW}, 1'); a('s_add_u32 s11, s11, s12'); a('s_lshl_b32 s11, s11, 12')
    a(f's_and_b32 s12, {sW}, 1'); a('s_lshl_b32 s12, s12, 8'); a('s_add_u32 s11, s11, s12'); a(f's_add_u32 s11, s11, {STAT_OFF}')
    a(f'v_and_b32 v5, 31, {vL}'); a('v_lshlrev_b32 v5, 3, v5'); a('v_lshl_add_u32 v5, v4, 11, v5')
    for q in range(4): st = a.vmem(f'buffer_load_dwordx2 {vr(12+2*q,2)}, v5, {WS}, s11 offen offset:{512*q} sc1')
    a(f's_mul_i32 s11, {sM}, 3'); a('s_lshr_b32 s11, s11, 1')
    a(f'v_lshrrev_b32 v5, 2, {vL}')
    a('v_and_b32 v6, 1, v5'); a('v_add_u32 v6, s11, v6'); a('v_min_u32 v6, 23, v6')
    a('v_bfe_u32 v7, v5, 1, 2'); a('v_mul_u32_u24 v7, 24, v7'); a('v_add_u32 v6, v6, v7')
    a('v_lshrrev_b32 v7, 3, v5'); a('v_mul_u32_u24 v7, 96, v7'); a('v_add_u32 v6, v6, v7')
    a('v_and_b32 v7, 7, v6'); a('v_lshrrev_b32 v6, 3, v6')
    a('v_lshlrev_b32 v7, 5, v7'); a('v_add_u32 v6, v6, v7')
    a(f'v_and_b32 v7, 3, {vL}'); a('v_lshl_add_u32 v6, v6, 2, v7'); a('v_lshlrev_b32 v6, 7, v6'); a(f'v_add_u32 v6, {FLAG_OFF}, v6')
    poll_flags(a, 'v6', 64, 4, 'v7')
    a(f's_mul_i32 s11, {sW}, 1536'); a(f's_mul_i32 s12, {sM}, 96'); a('s_add_u32 s11, s11, s12'); a('s_lshl_b32 s11, s11, 2'); a(f's_add_u32 s11, s11, {UT_OFF}')
    a(f'v_lshlrev_b32 v5, 3, {vL}')
    set_exec(a, (1 << 48)-1)
    for kq in range(4):
        ut = a.vmem(f'buffer_load_dwordx2 {vr(20+2*kq,2)}, v5, {WS}, s11 offen sc1')
        if kq < 3: a(f's_add_u32 s11, s11, {6144*4}')
    a.wait_vm(ut)
    for d in (0, 1):
        a(f'v_add_f32 {vr(20+d)}, {vr(20+d)}, {vr(22+d)}'); a(f'v_add_f32 {vr(24+d)}, {vr(24+d)}, {vr(26+d)}'); a(f'v_add_f32 {vr(20+d)}, {vr(20+d)}, {vr(24+d)}')
    a(f's_mul_i32 s11, {sW}, 384'); a(f's_add_u32 s11, s11, {L_UT}'); a('v_add_u32 v5, s11, v5')
    a.lds('ds_write_b64 v5, v[20:21]')
    set_exec(a, (1 << 64)-1)
    for q in range(1, 4):
        a(f'v_add_f32 v12, v12, {vr(12+2*q)}'); a(f'v_add_f32 v13, v13, {vr(13+2*q)}')
    for v in ('v12', 'v13'):
        a(f'v_mov_b32 v14, {v}'); a(f'v_mov_b32 v15, {v}'); a('v_permlane32_swap_b32 v14, v15'); a(f'v_add_f32 {v}, v14, v15')
    a(f'v_mul_f32 v12, {hex(f2u(1.0/640))}, v12'); a(f'v_mul_f32 v13, {hex(f2u(1.0/640))}, v13')
    a('v_fma_f32 v13, -v12, v12, v13'); a('v_max_f32 v13, 0, v13'); a(f'v_add_f32 v13, {hex(f2u(1e-5))}, v13')
    a('v_rsq_f32 v10, v13'); a('v_mul_f32 v11, v10, v12'); a('v_sub_f32 v11, 0, v11')
    a.wait_all_lg()
    a('s_barrier')
    stamp(a, 18)
    ACC = 32
    WB = 96
    UTV = 128
    TM = 144
    a(f'v_add_u32 v16, 65536, {vT16}'); a(f'v_add_u32 v17, 131072, {vT16}')
    def laddr(byte):
        b = byte//65536
        return [vT16, 'v16', 'v17'][b], byte-65536*b
    a(f'v_lshrrev_b32 v18, 5, {vL}'); a('v_lshlrev_b32 v18, 4, v18'); a(f'v_add_u32 v18, {L_UT}, v18')
    a(f'v_and_b32 v2, 15, {vL}'); a(f'v_bfe_u32 v3, {vL}, 4, 1'); a(f'v_lshrrev_b32 v4, 5, {vL}')
    a(f'v_mul_u32_u24 v19, {ATILE_B}, v3'); a('v_lshl_add_u32 v19, v4, 8, v19'); a('v_lshl_add_u32 v19, v2, 4, v19')
    a(f's_mul_i32 s86, s87, {ATILE_B}'); a(f's_mul_i32 s12, {sM}, 3072'); a('s_add_u32 s86, s86, s12'); a(f's_add_u32 s86, s86, {ACT_OFF}')
    a(f'v_mov_b32 v20, {hex(f2u(-2.0*0.7978845608028654*1.4426950408889634))}')
    seq = [(p, s, m) for p in range(3) for s in range(40) for m in range(2)]
    wt = {}
    def rd(idx):
        p, s, m = seq[idx]
        v, off = laddr(slot(p, s)*2048+1024*m)
        wt[idx] = a.lds(f'ds_read_b128 {vr(WB+4*(idx%8),4)}, {v} offset:{off}')
    LA = 6
    dma_tok = {}
    def epilogue(p):
        A = ACC+32*(p & 1)
        for q in range(4):
            for k in range(4): tk = a.lds(f'ds_read_b128 {vr(UTV+4*k,4)}, v18 offset:{384*k+128*p+32*q}')
            a.wait_lg(tk)
            for r in range(4):
                g = vr(A+4*q+r); u = vr(A+16+4*q+r)
                a(f'v_fma_f32 {vr(UTV+4+r)}, v11, {vr(UTV+r)}, {vr(UTV+4+r)}')
                a(f'v_fma_f32 {vr(UTV+12+r)}, v11, {vr(UTV+8+r)}, {vr(UTV+12+r)}')
                a(f'v_fma_f32 {g}, v10, {g}, {vr(UTV+4+r)}')
                a(f'v_fma_f32 {u}, v10, {u}, {vr(UTV+12+r)}')
            ops = [gelu_ops(vr(A+4*q+r), vr(TM+r), vr(A+16+4*q+r), vr(A+4*q+r)) for r in range(4)]
            for k in range(len(ops[0])):
                for r in range(4): a(ops[r][k])
            a(f'v_cvt_pk_bf16_f32 {vr(TM+8+2*q)}, {vr(A+4*q)}, {vr(A+4*q+1)}')
            a(f'v_cvt_pk_bf16_f32 {vr(TM+8+2*q+1)}, {vr(A+4*q+2)}, {vr(A+4*q+3)}')
        t = None
        for q0 in (0, 2):
            b = TM+8+2*q0
            a(f'v_permlane32_swap_b32 {vr(b)}, {vr(b+2)}'); a(f'v_permlane32_swap_b32 {vr(b+1)}, {vr(b+3)}')
            t = a.vmem(f'buffer_store_dwordx4 {vr(b,4)}, v19, {WS}, s86 offen offset:{1024*p+256*q0} sc1')
        return t
    for idx in range(LA): rd(idx)
    last_store = None
    for idx, (p, s, m) in enumerate(seq):
        if s == 0 and m == 0 and p > 0:
            a('s_barrier')
            if p == 1:
                for k in range(2):
                    dma_tok['p1'] = dg.piece(4096*k, 81920+36*2048+4096*k)
                for k in range(18):
                    dma_tok['p2'] = dg.piece(8192+4096*k, 163840+4096*k)
            else:
                for k in range(2):
                    dma_tok['p2b'] = dg.piece(81920+4096*k, 163840+36*2048+4096*k)
                for k in range(15):
                    dma_tok['d0'] = dd.piece(wd_addr(0)+4096*k, 4096*k)
            last_store = epilogue(p-1)
        nidx = idx+LA
        if nidx < len(seq):
            np_, ns, nm = seq[nidx]
            if nm == 0 and ((np_ == 1 and ns == 36) or (np_ == 2 and ns in (0, 36))):
                a.wait_vm(dma_tok['p1' if np_ == 1 else ('p2' if ns == 0 else 'p2b')])
                a('s_barrier')
        if p == 0 and m == 0: a.wait_vm(yt[s])
        a.wait_lg(wt[idx])
        A = ACC+32*(p & 1)+16*m
        a(f'v_mfma_f32_32x32x16_bf16 {vr(A,16)}, {vr(WB+4*(idx%8),4)}, {ar(4*s,4)}, {"0" if s == 0 else vr(A,16)}')
        if nidx < len(seq): rd(nidx)
    stamp(a, 19)
    a('s_barrier')
    for k in range(20): dma_tok['d1'] = dd.piece(wd_addr(12)+4096*k, 5120*12+4096*k)
    dma_tok['d2'] = dd.piece(wd_addr(28), 5120*28)
    a(f's_mov_b32 m0, {wd_addr(28)+4096}')
    a(f's_sub_u32 s91, s89, s90'); a(f's_add_u32 s91, s91, {5120*28+4096}')
    dma_tok['d2'] = a.vmem(f'buffer_load_dwordx4 {vT16}, {WS}, s91 offen sc1 lds')
    last_store = epilogue(2)
    stamp(a, 20)
    a.wait_vm(last_store)
    flag_store(a, 5)
    stamp(a, 21)
```

```python
from layout import *
import gen as G
from gen import vr, ar, stamp, set_exec, flag_store, poll_flags, WS, SA, SB, SC_, sW, sSG, sM, sN, sROT, sFL, vL, f2u, srd, newlab
from gen_p3 import wd_addr, Dma, vT16
from gen_p2 import X1A

def phase4(a, o):
    a.comment('================ phase 4')
    sCB, sRB = 's80', 's81'
    a(f's_and_b32 {sCB}, {sM}, 7'); a(f's_lshr_b32 {sRB}, {sM}, 3')
    a(f's_lshl_b32 s11, {sRB}, 2'); a(f's_add_u32 s11, s11, {sW}'); a('s_lshr_b32 s12, s11, 1')
    a(f's_lshl_b32 s13, {sSG}, 6'); a('s_add_u32 s12, s12, s13')
    a(f'v_lshl_add_u32 v5, {vL}, 2, s12'); a('v_lshlrev_b32 v5, 7, v5'); a(f'v_add_u32 v5, {FLAG_OFF}, v5')
    poll_flags(a, 'v5', 16, 5, 'v6')
    stamp(a, 22)
    a(f's_lshl_b32 s13, {sSG}, 3'); a('s_add_u32 s87, s13, s11')
    a(f's_mul_i32 s12, s87, {ATILE_B}'); a(f's_add_u32 s12, s12, {ACT_OFF}')
    at = []
    for s in range(48):
        at.append(a.vmem(f'buffer_load_dwordx4 {ar(4*s,4)}, {vT16}, {WS}, s12 offen offset:{1024*(s%4)} sc1'))
        if s % 4 == 3 and s < 47: a('s_add_u32 s12, s12, 4096')
    a('s_barrier')
    dd = Dma(a, 's89')
    ACC = 32; WB = 64
    a(f'v_add_u32 v16, 65536, {vT16}'); a(f'v_add_u32 v17, 131072, {vT16}')
    def laddr(byte):
        b = byte//65536
        return [vT16, 'v16', 'v17'][b], byte-65536*b
    seq = [(s, nt) for s in range(48) for nt in range(5)]
    wt = {}
    def rd(idx):
        s, nt = seq[idx]; v, off = laddr(wd_addr(s)+1024*nt)
        wt[idx] = a.lds(f'ds_read_b128 {vr(WB+4*(idx%10),4)}, {v} offset:{off}')
    LA = 9
    tok = {}
    for idx in range(LA): rd(idx)
    for idx, (s, nt) in enumerate(seq):
        if nt == 0 and s == 12:
            a('s_barrier')
            for k in range(15): tok['a'] = dd.piece(wd_addr(29)+4096*k, 5120*29+4096*k)
        if nt == 0 and s == 19:
            a('s_barrier')
            for k in range(8): tok['b'] = dd.piece(wd_addr(41)+4096*k, 5120*41+4096*k)
            a(f's_cmp_lt_u32 {sW}, 3'); a('s_cselect_b32 s91, s89, 0x40000000'); a(f's_add_u32 s91, s91, {5120*41+4096*8}')
            a(f's_add_u32 m0, s90, {wd_addr(41)+4096*8}')
            L3 = newlab('skip3'); a(f's_cmp_eq_u32 {sW}, 3'); a(f's_cbranch_scc1 {L3}')
            a.vmem(f'buffer_load_dwordx4 {vT16}, {WS}, s91 offen sc1 lds', optional=True)
            a.label(L3)
            tok['b_extra'] = True
        nidx = idx+LA
        if nidx < len(seq):
            ns, nn = seq[nidx]
            if nn == 0 and ns == 29:
                a.wait_vm(tok['a']); a('s_barrier')
            if nn == 0 and ns == 41:
                a.wait_all_vm(); a('s_barrier')
        if nt == 0: a.wait_vm(at[s])
        a.wait_lg(wt[idx])
        a(f'v_mfma_f32_16x16x32_bf16 {vr(ACC+4*nt,4)}, {vr(WB+4*(idx%10),4)}, {ar(4*s,4)}, {"0" if s == 0 else vr(ACC+4*nt,4)}')
        if nidx < len(seq): rd(nidx)
    stamp(a, 23)
    a(f'v_lshrrev_b32 v3, 4, {vL}'); a('v_lshlrev_b32 v4, 4, v3'); a(f'v_add_u32 v4, {L_VEC+640}, v4')
    GB = 112
    for nt in range(5): tg = a.lds(f'ds_read_b128 {vr(GB+4*nt,4)}, v4 offset:{64*nt}')
    XF = 136; PK = 160
    a('s_mov_b32 s11, 0xffff0000')
    for i in range(10):
        a(f'v_accvgpr_read_b32 {vr(PK+i)}, {ar(X1A+i)}')
    for i in range(10):
        a(f'v_lshlrev_b32 {vr(XF+2*i)}, 16, {vr(PK+i)}'); a(f'v_and_b32 {vr(XF+2*i+1)}, s11, {vr(PK+i)}')
    a.wait_lg(tg)
    for i in range(20): a(f'v_fmac_f32 {vr(XF+i)}, {vr(GB+i)}, {vr(ACC+i)}')
    for i in range(10): a(f'v_cvt_pk_bf16_f32 {vr(PK+i)}, {vr(XF+2*i)}, {vr(XF+2*i+1)}')
    a(f'v_mov_b32 {vr(PK+10)}, {vr(PK+8)}'); a(f'v_mov_b32 {vr(PK+11)}, {vr(PK+9)}')
    for p in range(3):
        for d in (0, 1): a(f'v_permlane16_swap_b32 {vr(PK+4*p+d)}, {vr(PK+4*p+2+d)}')
    srd(a, 44, G.P_OUT, S*D*2)
    a(f'v_and_b32 v2, 15, {vL}')
    a('v_and_b32 v5, 1, v3'); a('v_lshlrev_b32 v5, 1, v5'); a('v_lshrrev_b32 v6, 1, v3'); a('v_add_u32 v5, v5, v6')
    a('v_lshlrev_b32 v5, 4, v5'); a('v_mul_u32_u24 v6, 1280, v2'); a('v_add_u32 v5, v5, v6')
    a(f's_lshl_b32 s11, s87, 4'); a('s_mul_i32 s11, s11, 1280'); a(f's_mul_i32 s12, {sCB}, 160'); a('s_add_u32 s11, s11, s12')
    a.vmem(f'buffer_store_dwordx4 {vr(PK,4)}, v5, {SA}, s11 offen')
    a.vmem(f'buffer_store_dwordx4 {vr(PK+4,4)}, v5, {SA}, s11 offen offset:64')
    set_exec(a, 0x0000ffff0000ffff)
    a.vmem(f'buffer_store_dwordx4 {vr(PK+8,4)}, v5, {SA}, s11 offen offset:128')
    set_exec(a, (1 << 64)-1)
    stamp(a, 24)
```

```python
S, D, H, DH, F = 2048, 640, 32, 20, 1536
Z_OFF     = 0x0
RFLAG_OFF = 0x1000
FLAG_OFF  = 0x2000
GRAN_OFF  = 0x40000
UT_OFF    = 0x60000
STAT_OFF  = 0x80000
XH_OFF    = 0x100000
O_OFF     = 0x400000
Y_OFF     = 0x700000
ACT_OFF   = 0xA00000
WO_OFF    = 0x1000000
WGU_OFF   = 0x1100000
WD_OFF    = 0x1500000
PROF_OFF  = 0x1800000
WS_USED   = 0x1900000
TILE_B    = 20480
ATILE_B   = 49152
LCG_A = 0x9E3779B1
LCG_C = 0x7F4A7C15
L_W      = 0
L_STG    = 122880
L_G1     = 153600
L_S1     = 156160
L_SC     = 158720
LDS_TOTAL = 163840
L_UTSTG  = 139264
L_VEC    = 159744
L_VG     = 160768
L_UT     = 161536
RING_SLOTS = 76
```

```python
import sys, argparse
if __name__ == '__main__': sys.modules['gen'] = sys.modules['__main__']
from asmcore import Asm, hazard_pass
from layout import *

KNAME = 'adaLN_cond__sliding_local_dilated__geglu_ffn__prompt_kernel'

class Opt:
    stop = 99
    prof = False
    npre = 3
    spin = 200000
o = Opt()

sW, sSG, sM, sXCD, sJ, sN, sROT, sFL = 's3', 's4', 's5', 's6', 's7', 's8', 's9', 's10'
P_X, P_WQKV, P_WO, P_BX, P_WG, P_WU, P_WD, P_C, P_WMOD, P_OUT, P_DBG, P_WS = [16+2*i for i in range(12)]
WS = 's[40:43]'; SA = 's[44:47]'; SB = 's[48:51]'; SC_ = 's[52:55]'
vL = 'v0'
vPROF = 'v255'

def srd(a, base, ptr, size):
    a(f's_mov_b32 s{base}, s{ptr}')
    a(f's_mov_b32 s{base+1}, s{ptr+1}')
    a(f's_mov_b32 s{base+2}, {size}')
    a(f's_mov_b32 s{base+3}, 0x20000')

def set_exec(a, mask):
    lo, hi = mask & 0xffffffff, mask >> 32
    if mask == (1 << 64)-1: a('s_mov_b64 exec, -1'); return
    a(f's_mov_b32 exec_lo, {hex(lo)}'); a(f's_mov_b32 exec_hi, {hex(hi)}')

def vr(b, n=1): return f'v{b}' if n == 1 else f'v[{b}:{b+n-1}]'
def ar(b, n=1): return f'a{b}' if n == 1 else f'a[{b}:{b+n-1}]'

_lab = [0]
def newlab(p):
    _lab[0] += 1; return f'L_{p}_{_lab[0]}'

def stamp(a, idx):
    if not o.prof: return
    a('s_memrealtime s[100:101]')
    a('s_waitcnt lgkmcnt(0)'); a.lg = []
    a(f'v_writelane_b32 {vPROF}, s100, {idx}')

def flag_store(a, phase):
    a(f's_add_u32 s72, {sN}, {phase}')
    a('v_mov_b32 v1, s72')
    a('s_mov_b64 exec, 1')
    a.vmem(f'buffer_store_dword v1, off, {WS}, {sFL} sc1', optional=True)
    a('s_mov_b64 exec, -1')

def poll_flags(a, vaddr, nlanes, phase, vtmp):
    L = newlab('poll'); Ld = newlab('polld')
    mask = (1 << nlanes)-1
    set_exec(a, mask)
    a(f's_add_u32 s72, {sN}, {phase}')
    a(f's_mov_b32 s73, {o.spin}')
    a.label(L)
    a(f'buffer_load_dword {vtmp}, {vaddr}, {WS}, 0 offen sc1')
    a('s_waitcnt vmcnt(0)'); a.vm = []
    a(f'v_subrev_u32 {vtmp}, s72, {vtmp}')
    a(f'v_cmp_lt_u32 vcc, {7-phase}, {vtmp}')
    a('s_sub_u32 s73, s73, 1')
    a('s_cmp_eq_u32 s73, 0')
    a(f's_cbranch_scc1 {Ld}')
    a(f's_cbranch_vccnz {L}')
    a.label(Ld)
    a('s_mov_b64 exec, -1')

def prologue(a):
    a('s_cmp_ge_u32 s2, 256')
    a('s_cbranch_scc1 L_exit')
    a('s_load_dwordx16 s[16:31], s[0:1], 0')
    a('s_load_dwordx8 s[32:39], s[0:1], 64')
    a('v_lshrrev_b32 v1, 6, v0')
    a('v_and_b32 v0, 63, v0')
    a(f'v_readfirstlane_b32 {sW}, v1')
    a(f's_and_b32 {sXCD}, s2, 7')
    a(f's_lshr_b32 {sJ}, s2, 3')
    a(f's_and_b32 {sM}, {sJ}, 15')
    a(f's_lshr_b32 s11, {sJ}, 4')
    a(f's_lshl_b32 {sSG}, {sXCD}, 1')
    a(f's_add_u32 {sSG}, {sSG}, s11')
    a(f's_sub_u32 s11, {sXCD}, 5')
    a(f's_cmp_ge_u32 {sXCD}, 5')
    a(f's_cselect_b32 {sROT}, s11, {sXCD}')
    a(f's_lshl_b32 s11, {sSG}, 4')
    a(f's_add_u32 s11, s11, {sM}')
    a('s_lshl_b32 s11, s11, 2')
    a(f's_add_u32 s11, s11, {sW}')
    a('s_lshl_b32 s11, s11, 7')
    a(f's_add_u32 {sFL}, s11, {FLAG_OFF}')
    if o.prof:
        a(f'v_mov_b32 {vPROF}, 0')
    a('s_getpc_b64 s[14:15]')
    a.label('L_pc')
    a('s_waitcnt lgkmcnt(0)')
    srd(a, 40, P_WS, WS_USED)
    stamp(a, 0)
    a(f'buffer_load_dword v2, off, {WS}, 0 sc1')
    t_nonce = 'nonce'
    a(f's_lshl_b32 s11, {sJ}, 2')
    a(f's_add_u32 s11, s11, {sW}')
    a('s_cmp_ge_u32 s11, (L_code_end-L_pc+8191)/8192')
    a('s_cbranch_scc1 L_nopf')
    a('s_lshl_b32 s11, s11, 13')
    a(f'v_lshl_add_u32 v3, {vL}, 7, s11')
    a('v_min_u32 v3, (L_code_end-L_pc-4), v3')
    a('global_load_dword v4, v3, s[14:15]')
    a.label('L_nopf')
    a(f's_cmp_eq_u32 {sW}, 2')
    a('s_cbranch_scc1 L_role_mod')
    a(f's_cmp_eq_u32 {sW}, 3')
    a('s_cbranch_scc1 L_role_dma')

def get_nonce(a):
    a('v_readfirstlane_b32 s11, v2')
    a(f's_mul_i32 {sN}, s11, {hex(LCG_A)}')
    a(f's_add_u32 {sN}, {sN}, {hex(LCG_C)}')

def row_reduce16(a, v, t):
    for r in (8, 4, 2, 1):
        a(f'v_add_f32_dpp {v}, {v}, {v} row_ror:{r} row_mask:0xf bank_mask:0xf')

def role_ln(a):
    a.comment('==== role: LayerNorm of 4 rows per wave (waves 0,1) -> xhat (f16, fragment-major)')
    a.reset_counts()
    srd(a, 44, P_X, S*D*2)
    a(f's_lshl_b32 s11, {sSG}, 7')
    a(f's_lshl_b32 s12, {sM}, 3')
    a('s_add_u32 s11, s11, s12')
    a(f's_lshl_b32 s12, {sW}, 2')
    a('s_add_u32 s11, s11, s12')
    a('s_mul_i32 s11, s11, 1280')
    a(f'v_lshrrev_b32 v5, 4, {vL}')
    a(f'v_and_b32 v6, 15, {vL}')
    a('v_mul_u32_u24 v7, 1280, v5')
    a('v_lshl_add_u32 v7, v6, 4, v7')
    X = 8
    toks = [a.vmem(f'buffer_load_dwordx4 {vr(X+4*t,4)}, v7, {SA}, s11 offen offset:{256*t}') for t in range(5)]
    a(f's_and_b32 s12, {sM}, 1')
    a('s_lshl_b32 s12, s12, 3')
    a(f's_lshl_b32 s13, {sW}, 2')
    a('s_add_u32 s12, s12, s13')
    a('v_add_u32 v5, s12, v5')
    a('v_lshlrev_b32 v5, 4, v5')
    a('v_lshl_add_u32 v5, v6, 8, v5')
    a(f's_lshr_b32 s12, {sM}, 1')
    a(f's_lshl_b32 s13, {sSG}, 3')
    a('s_add_u32 s12, s12, s13')
    a(f's_mul_i32 s12, s12, {TILE_B}')
    a(f's_add_u32 s12, s12, {XH_OFF}')
    U = 32
    a('s_mov_b32 s13, 0xffff0000')
    for t in range(5):
        a.wait_vm(toks[t])
        if t == 0: get_nonce(a)
        for d in range(4):
            a(f'v_lshlrev_b32 {vr(U+8*t+2*d)}, 16, {vr(X+4*t+d)}')
            a(f'v_and_b32 {vr(U+8*t+2*d+1)}, s13, {vr(X+4*t+d)}')
    for k in range(4): a(f'v_add_f32 {vr(72+k)}, {vr(U+k)}, {vr(U+4+k)}')
    for e in range(8, 40): a(f'v_add_f32 {vr(72+e%4)}, {vr(72+e%4)}, {vr(U+e)}')
    a('v_add_f32 v72, v72, v73'); a('v_add_f32 v74, v74, v75'); a('v_add_f32 v72, v72, v74')
    row_reduce16(a, 'v72', 'v73')
    a(f'v_mul_f32 v72, {hex(f2u(1.0/640))}, v72')
    for e in range(40): a(f'v_sub_f32 {vr(U+e)}, {vr(U+e)}, v72')
    for k in range(4): a(f'v_mul_f32 {vr(73+k)}, {vr(U+k)}, {vr(U+k)}')
    for e in range(4, 40): a(f'v_fmac_f32 {vr(73+e%4)}, {vr(U+e)}, {vr(U+e)}')
    a('v_add_f32 v73, v73, v74'); a('v_add_f32 v75, v75, v76'); a('v_add_f32 v73, v73, v75')
    row_reduce16(a, 'v73', 'v74')
    a(f'v_mov_b32 v74, {hex(f2u(1e-5))}')
    a(f'v_fmac_f32 v74, {hex(f2u(1.0/640))}, v73')
    a('v_rsq_f32 v74, v74')
    for e in range(40): a(f'v_mul_f32 {vr(U+e)}, {vr(U+e)}, v74')
    for t in range(5):
        for d in range(4):
            a(f'v_cvt_pk_f16_f32 {vr(X+4*t+d)}, {vr(U+8*t+2*d)}, {vr(U+8*t+2*d+1)}')
        a.vmem(f'buffer_store_dwordx4 {vr(X+4*t,4)}, v5, {WS}, s12 offen sc1')
        if t < 4: a('s_add_u32 s12, s12, 4096')
    a.wait_all_vm()
    flag_store(a, 1)
    stamp(a, 1)
    a(f's_cmp_eq_u32 {sW}, 1')
    a('s_cbranch_scc1 L_gather_sa')
    a(f'v_lshrrev_b32 v5, 1, {vL}')
    a(f'v_and_b32 v6, 1, {vL}')
    a(f's_lshl_b32 s11, {sSG}, 4')
    a('v_add_u32 v7, s11, v5')
    a(f's_cmp_eq_u32 {sSG}, 0')
    a('s_cselect_b32 s12, 16, 18')
    a('v_subrev_u32 v8, s12, v7')
    a(f'v_cmp_gt_u32 vcc, 32, {vL}')
    a('v_cndmask_b32 v7, v8, v7, vcc')
    a('v_lshl_add_u32 v7, v7, 2, v6')
    a('v_lshlrev_b32 v7, 7, v7')
    a(f'v_add_u32 v7, {FLAG_OFF}, v7')
    poll_flags(a, 'v7', 36, 1, 'v8')
    stamp(a, 2)
    a('s_branch L_p0_join')

def f2u(x):
    import struct
    return struct.unpack('<I', struct.pack('<f', x))[0]

def gather_vec(a, colbase_s, nload, V, plus_one, lds_addr_v, label):
    L = newlab('gath'); Ld = newlab('gathd')
    a(f'v_lshlrev_b32 v5, 4, {vL}')
    a(f's_lshl_b32 s11, {colbase_s}, 3')
    a(f's_add_u32 s11, s11, {GRAN_OFF}')
    a(f's_mov_b32 s73, {o.spin}')
    a.label(L)
    a('s_mov_b32 s12, s11')
    for kq in range(4):
        for t in range(nload):
            a(f'buffer_load_dwordx4 {vr(V+(kq*nload+t)*4,4)}, v5, {WS}, s12 offen offset:{1024*t if 1024*t < 4096 else 0} sc1' if t < 4 else
              f'buffer_load_dwordx4 {vr(V+(kq*nload+t)*4,4)}, v5, {WS}, s13 offen sc1')
            if t == 3 and nload > 4: a(f's_add_u32 s13, s12, 4096')
        if kq < 3: a(f's_add_u32 s12, s12, {3840*8}')
    a('s_waitcnt vmcnt(0)'); a.vm = []
    n = 4*nload
    a(f'v_max_u32 v6, {vr(V+1)}, {vr(V+3)}')
    a(f'v_min_u32 v7, {vr(V+1)}, {vr(V+3)}')
    for q in range(1, n):
        a(f'v_max3_u32 v6, v6, {vr(V+4*q+1)}, {vr(V+4*q+3)}')
        a(f'v_min3_u32 v7, v7, {vr(V+4*q+1)}, {vr(V+4*q+3)}')
    a(f'v_cmp_ne_u32 vcc, {sN}, v6')
    a(f'v_cmp_ne_u32 s[74:75], {sN}, v7')
    a('s_or_b64 vcc, vcc, s[74:75]')
    a('s_sub_u32 s73, s73, 1')
    a('s_cmp_eq_u32 s73, 0')
    a(f's_cbranch_scc1 {Ld}')
    a(f's_cbranch_vccnz {L}')
    a.label(Ld)
    for t in range(nload):
        for h in (0, 2):
            b0 = V+4*t+h
            a(f'v_add_f32 {vr(b0)}, {vr(b0)}, {vr(V+4*(nload+t)+h)}')
            a(f'v_add_f32 {vr(V+4*(2*nload+t)+h)}, {vr(V+4*(2*nload+t)+h)}, {vr(V+4*(3*nload+t)+h)}')
            a(f'v_add_f32 {vr(b0)}, {vr(b0)}, {vr(V+4*(2*nload+t)+h)}')
    a('s_mov_b32 s13, 0xffff0000')
    for t in range(nload):
        p = V+4*t
        a(f'v_cvt_pk_bf16_f32 {vr(p+1)}, {vr(p)}, {vr(p+2)}')
        if plus_one:
            a(f'v_lshlrev_b32 {vr(p)}, 16, {vr(p+1)}')
            a(f'v_and_b32 {vr(p+2)}, s13, {vr(p+1)}')
            a(f'v_add_f32 {vr(p)}, 1.0, {vr(p)}')
            a(f'v_add_f32 {vr(p+2)}, 1.0, {vr(p+2)}')
            a(f'v_cvt_pk_bf16_f32 {vr(p+1)}, {vr(p)}, {vr(p+2)}')
        a(f'v_lshlrev_b32 {vr(p+2)}, 16, {vr(p+1)}')
        a(f'v_and_b32 {vr(p+3)}, s13, {vr(p+1)}')

def gather_gs(a, which):
    V = 8
    a(f's_mov_b32 s15, {640*which}')
    gather_vec(a, 's15', 5, V, which == 1, None, None)
    a(f'v_lshlrev_b32 v5, 3, {vL}')
    for t in range(5):
        a(f's_sub_u32 s11, {t+5}, {sROT}')
        a('s_sub_u32 s12, s11, 5')
        a('s_cmp_ge_u32 s11, 5')
        a('s_cselect_b32 s11, s12, s11')
        a('s_lshl_b32 s11, s11, 9')
        a(f's_add_u32 s11, s11, {L_G1 if which else L_S1}')
        a('v_add_u32 v6, s11, v5')
        a.lds(f'ds_write_b64 v6, {vr(V+4*t+2,2)}')
    a.wait_all_lg()

def role_mod(a):
    a.comment('==== role: mod partial (wave 2): silu(c)[160 kq..] @ w_mod[160 rows, 64 cols] via MFMA')
    a.label('L_role_mod')
    a.reset_counts()
    a('s_cmp_ge_u32 s2, 240')
    a('s_cbranch_scc1 L_mod_skip')
    a('s_mul_i32 s11, s2, 1093')
    a('s_lshr_b32 s11, s11, 16')
    a('s_mul_i32 s12, s11, 60')
    a('s_sub_u32 s12, s2, s12')
    srd(a, 44, P_C, D*2)
    srd(a, 48, P_WMOD, D*6*D*2)
    a('s_mul_i32 s13, s11, 320')
    a(f'v_lshlrev_b32 v5, 3, {vL}')
    tc = a.vmem(f'buffer_load_dwordx2 v[8:9], v5, {SA}, s13 offen')
    a(f'v_lshrrev_b32 v6, 3, {vL}')
    a(f'v_and_b32 v7, 7, {vL}')
    a('v_mul_u32_u24 v6, 7680, v6')
    a('v_lshl_add_u32 v6, v7, 4, v6')
    a(f's_mul_i32 s13, s11, {160*7680}')
    a('s_lshl_b32 s72, s12, 7')
    a('s_add_u32 s13, s13, s72')
    td = None
    for t in range(20):
        a(f's_mov_b32 m0, {L_STG+1024*t}')
        td = a.vmem(f'buffer_load_dwordx4 v6, {SB}, s13 offen lds')
        if t < 19: a(f's_add_u32 s13, s13, {8*7680}')
    a('s_mul_i32 s13, s11, 3840')
    a('s_lshl_b32 s72, s12, 6')
    a('s_add_u32 s13, s13, s72')
    a('s_lshl_b32 s13, s13, 3')
    a(f's_add_u32 s76, s13, {GRAN_OFF}')
    a(f'v_lshrrev_b32 v20, 4, {vL}')
    a('v_lshlrev_b32 v21, 5, v20')
    a(f'v_and_b32 v22, 15, {vL}')
    a('v_lshrrev_b32 v23, 2, v22')
    a('v_lshl_add_u32 v23, v20, 3, v23')
    a('v_lshlrev_b32 v23, 7, v23')
    a('v_and_b32 v24, 3, v22')
    a('v_lshl_add_u32 v23, v24, 3, v23')
    a(f'v_add_u32 v23, {L_STG}, v23')
    a('v_lshlrev_b32 v25, 4, v20')
    a(f'v_add_u32 v25, {L_SC}, v25')
    a.wait_vm(tc)
    get_nonce(a)
    a('s_mov_b32 s13, 0xffff0000')
    a('v_lshlrev_b32 v10, 16, v8'); a('v_and_b32 v11, s13, v8')
    a('v_lshlrev_b32 v12, 16, v9'); a('v_and_b32 v13, s13, v9')
    for k in range(4): a(f'v_mul_f32 {vr(14+k)}, {hex(f2u(-1.4426950408889634))}, {vr(10+k)}')
    for k in range(4): a(f'v_exp_f32 {vr(14+k)}, {vr(14+k)}')
    for k in range(4): a(f'v_add_f32 {vr(14+k)}, 1.0, {vr(14+k)}')
    for k in range(4): a(f'v_rcp_f32 {vr(14+k)}, {vr(14+k)}')
    for k in range(4): a(f'v_mul_f32 {vr(10+k)}, {vr(10+k)}, {vr(14+k)}')
    a('v_cvt_pk_bf16_f32 v10, v10, v11'); a('v_cvt_pk_bf16_f32 v11, v12, v13')
    a(f'v_add_u32 v5, {L_SC}, v5')
    a.lds('ds_write_b64 v5, v[10:11]')
    a.wait_all_lg()
    a.wait_vm(td)
    stamp(a, 1)
    ACC = 32; WF = 48; VF = 64
    for s in range(5):
        vf = VF+4*(s & 1)
        tv = a.lds(f'ds_read_b128 {vr(vf,4)}, v25 offset:{64*s}')
        tw = []
        for nt in range(4):
            a.lds(f'ds_read_b64_tr_b16 {vr(WF+4*nt,2)}, v23 offset:{4096*s+32*nt}')
            tw.append(a.lds(f'ds_read_b64_tr_b16 {vr(WF+4*nt+2,2)}, v23 offset:{4096*s+32*nt+512}'))
        for nt in range(4):
            a.wait_lg(tw[nt])
            c = '0' if s == 0 else vr(ACC+4*nt, 4)
            a(f'v_mfma_f32_16x16x32_bf16 {vr(ACC+4*nt,4)}, {vr(WF+4*nt,4)}, {vr(vf,4)}, {c}')
    set_exec(a, 0x0001000100010001)
    for nt in range(4):
        b = 72+8*(nt & 1)
        for r in range(4):
            a(f'v_mov_b32 {vr(b+2*r)}, {vr(ACC+4*nt+r)}')
            a(f'v_mov_b32 {vr(b+2*r+1)}, {sN}')
        a.vmem(f'buffer_store_dwordx4 {vr(b,4)}, v21, {WS}, s76 offen offset:{128*nt} sc1')
        a.vmem(f'buffer_store_dwordx4 {vr(b+4,4)}, v21, {WS}, s76 offen offset:{128*nt+16} sc1')
    a('s_mov_b64 exec, -1')
    a('s_branch L_mod_done')
    a.label('L_mod_skip')
    a('s_waitcnt vmcnt(0)')
    get_nonce(a)
    a.label('L_mod_done')
    a.reset_counts()
    stamp(a, 2)
    gather_gs(a, 1)
    stamp(a, 3)
    a('s_branch L_p0_join')
    a.label('L_gather_sa')
    a.reset_counts()
    gather_gs(a, 0)
    stamp(a, 3)
    a('s_branch L_p0_join')

def wdma_setup(a, vdst='v1'):
    a(f'v_mul_u32_u24 v5, 4370, {vL}')
    a('v_lshrrev_b32 v5, 16, v5')
    a('v_mul_u32_u24 v6, 15, v5')
    a(f'v_sub_u32 v6, {vL}, v6')
    a('v_mul_u32_u24 v7, 13108, v6')
    a('v_lshrrev_b32 v7, 16, v7')
    a('v_mul_u32_u24 v8, 5, v7')
    a('v_sub_u32 v8, v6, v8')
    a('v_mul_u32_u24 v7, 1280, v7')
    a('v_lshl_add_u32 v7, v8, 4, v7')
    a('v_and_b32 v8, 1, v5')
    a('v_lshlrev_b32 v8, 2, v8')
    a('v_lshrrev_b32 v5, 1, v5')
    a('v_add_u32 v8, v8, v5')
    a('v_mul_u32_u24 v8, 3840, v8')
    a('v_add_u32 v7, v7, v8')
    a(f's_mul_i32 s11, {sM}, 80')
    a(f'v_add_u32 {vdst}, s11, v7')

def wgroup_row0(a, G, sdst):
    a(f's_add_u32 {sdst}, {sROT}, {G}')
    a(f's_sub_u32 s12, {sdst}, 5')
    a(f's_cmp_ge_u32 {sdst}, 5')
    a(f's_cselect_b32 {sdst}, s12, {sdst}')
    a(f's_mul_i32 {sdst}, {sdst}, {128*3840}')

def role_dma(a):
    a.comment('==== role: stream the Wqkv slice into LDS (wave 3)')
    a.label('L_role_dma')
    a.reset_counts()
    srd(a, 44, P_WQKV, D*3*D*2)
    wdma_setup(a, 'v9')
    set_exec(a, 0x0fffffffffffffff)
    last0 = None
    for G in range(o.npre):
        wgroup_row0(a, G, 's11')
        for q in range(32):
            a(f's_mov_b32 m0, {G*30720+q*960}')
            t = a.vmem(f'buffer_load_dwordx4 v9, {SA}, s11 offen lds')
            if G == 0 and q == 31: last0 = t
            if q < 31: a(f's_add_u32 s11, s11, {7680 if q % 2 == 0 else 23040}')
    a('s_mov_b64 exec, -1')
    if last0 in a.vm: a.wait_vm(last0)
    get_nonce(a)
    stamp(a, 1)

def build():
    a = Asm()
    prologue(a)
    role_ln(a)
    role_mod(a)
    role_dma(a)
    a.label('L_p0_join')
    a.reset_counts()
    a('s_barrier')
    stamp(a, 4)
    from gen_p1 import phase1
    if o.stop >= 1: phase1(a, o)
    if o.stop >= 2:
        from gen_p2 import phase2
        tl = phase2(a, o)
        if o.stop == 2:
            a.wait_all_vm(); flag_store(a, 4)
    if o.stop >= 3:
        from gen_p3 import phase3
        phase3(a, o, tl)
    if o.stop >= 4:
        from gen_p4 import phase4
        phase4(a, o)
    a('s_waitcnt vmcnt(0) lgkmcnt(0)')
    if o.prof:
        stamp(a, 63)
        a('s_lshl_b32 s11, s2, 2')
        a(f's_add_u32 s11, s11, {sW}')
        a('s_lshl_b32 s11, s11, 8')
        a(f's_add_u32 s11, s11, {PROF_OFF}')
        a(f'v_lshlrev_b32 v1, 2, {vL}')
        a(f'buffer_store_dword {vPROF}, v1, {WS}, s11 offen')
        a('s_waitcnt vmcnt(0)')
    a.label('L_exit')
    a('s_endpgm')
    a.label('L_code_end')
    lines, nn = hazard_pass(a.items)
    return lines, nn

HEADER = open('adaLN_cond__sliding_local_dilated__geglu_ffn__prompt.s.ref').read().split('; Override launch')[0]

def emit(path):
    lines, nn = build()
    s = HEADER
    s += '; One persistent launch: 256 workgroups (one per CU), phases handed over through tagged flags in d_ws.\n'
    s += f'; @launch grid=(256,1,1) block=(256,1,1) lds={LDS_TOTAL}\n'
    s += '.amdgcn_target "amdgcn-amd-amdhsa--gfx950"\n.text\n'
    s += f'.globl {KNAME}\n.p2align 8\n.type {KNAME},@function\n{KNAME}:\n'
    s += '\n'.join(lines)+'\n'
    s += f'''.section .rodata,"a"
.p2align 6
.amdhsa_kernel {KNAME}
  .amdhsa_next_free_vgpr 512
  .amdhsa_next_free_sgpr 102
  .amdhsa_accum_offset 256
  .amdhsa_group_segment_fixed_size 0
  .amdhsa_kernarg_size 96
  .amdhsa_user_sgpr_count 2
  .amdhsa_user_sgpr_kernarg_segment_ptr 1
  .amdhsa_system_sgpr_workgroup_id_x 1
  .amdhsa_float_denorm_mode_32 3
.end_amdhsa_kernel
'''
    open(path, 'w').write(s)
    return len(lines), nn

if __name__ == '__main__':
    ap = argparse.ArgumentParser()
    ap.add_argument('-o', default='k.s')
    ap.add_argument('--stop', type=int, default=99)
    ap.add_argument('--prof', action='store_true')
    ap.add_argument('--npre', type=int, default=3)
    args = ap.parse_args()
    o.stop = args.stop; o.prof = args.prof; o.npre = args.npre
    n, nn = emit(args.o)
    print(f'{args.o}: {n} lines, {nn} inserted nops')
```

```python
from layout import *
import gen as G
from gen import cpf, vr, ar, stamp, set_exec, flag_store, poll_flags, WS, SA, SB, SC_, sW, sSG, sM, sN, sFL, vL, f2u, srd, newlab

import repack as RP
from gen import flags_issue, flags_check, pkb
vT16, vT16b, vA, vAV, vGS = 'v8', 'v9', 'v10', 'v11', 'v12'
vHA, vHAV, vHG = 'v13', 'v14', 'v15'
vSG_, vSD_, vSM_, vFP = 'v16', 'v17', 'v18', 'v19'
vWOF = 'v244'; vO1, vO2, vO3 = 'v245', 'v246', 'v247'
ACC = 20; XR = 84; DEPTH = 8; HB = 148; HH = 164; GS = 168; TMP = 200; HRAW = 208; HGS = 228
AHACC = 64; COLD = 144
def wf(i, t): return (88 if i % 2 == 0 else 218)+4*t
def hwf(u, n): return (120 if u % 2 == 0 else 176)+4*n
def acc(T, t): return ACC+(T*8+t)*4
def xr(i, T): return XR+((i % DEPTH)*2+T)*4
def hb(i, T): return HB+((i & 1)*2+T)*4
def gs(i): return GS+(i & 1)*16
sKC = ['s18', 's19', 's30', 's31']; sPITCH = 's32'; SMIX = 's[20:23]'
MCUR = [f's[{56+2*r}:{57+2*r}]' for r in range(4)]
MPRV = [f's[{64+2*r}:{65+2*r}]' for r in range(4)]
MG0, MG1 = 's[92:93]', 's[94:95]'

def waddr(t, i, halo=False):
    ib = i if halo else (i % 8)
    if t == 7: return (vHAV if halo else vAV), ib*7680+7168
    return (vHA if halo else vA), ib*7680+1024*t

def transform_ops(src, dst, g, tmp=TMP):
    mix = []
    for d in range(4):
        t0 = tmp+2*d; t1 = t0+1
        mix.append(f'v_fma_mix_f32 {vr(t0)}, {vr(src+d)}, {vr(g+2*d)}, {vr(g+8+2*d)} op_sel_hi:[1,0,0]')
        mix.append(f'v_fma_mix_f32 {vr(t1)}, {vr(src+d)}, {vr(g+2*d+1)}, {vr(g+8+2*d+1)} op_sel:[1,0,0] op_sel_hi:[1,0,0]')
    cv = [f'v_cvt_pk_bf16_f32 {vr(dst+d)}, {vr(tmp+2*d)}, {vr(tmp+2*d+1)}' for d in range(4)]
    return mix[0:4]+[cv[0]]+mix[4:6]+[cv[1]]+mix[6:8]+[cv[2], cv[3]]

def gs_reads(i, addr, dst):
    return [f'ds_read_b128 {vr(dst+r,4)}, {addr} offset:{128*i+o2}' for (o2, r) in ((0, 0), (16, 4), (2560, 8), (2576, 12))]

HT = [2, 3, 4, 5, 6, 7]
H0 = 9
C0 = 11

def cold_scalars(a):
    a(f's_mul_i32 s11, {sSG}, 5'); a(f's_add_u32 {sKC[0]}, s11, {sW}'); a(f's_mov_b32 {sKC[1]}, {sKC[0]}')
    a(f's_lshl_b32 s12, {sSG}, 1'); a(f's_lshr_b32 s13, {sM}, 3'); a('s_add_u32 s12, s12, s13'); a('s_mul_i32 s12, s12, 6')
    a(f's_add_u32 {sKC[3]}, s12, {sW}'); a(f's_add_u32 {sKC[3]}, {sKC[3]}, 2')
    a('s_add_u32 s11, s11, 4'); a(f's_add_u32 s12, s12, {sW}'); a('s_sub_u32 s12, s12, 2')
    a(f's_cmp_lt_u32 {sW}, 2'); a(f's_cselect_b32 {sKC[2]}, s11, s12')

def cold_setup(a):
    RP.srd_for(a, 44, G.P_WG, D*F*2); RP.srd_for(a, 48, G.P_WU, D*F*2); RP.srd_for(a, 52, G.P_WD, D*F*2)
    a(f's_cmp_eq_u32 {sW}, 0'); a(f's_cselect_b32 s20, s{G.P_WG}, s{G.P_WU}'); a(f's_cselect_b32 s21, s{G.P_WG+1}, s{G.P_WU+1}')
    a(f's_cmp_lt_u32 {sW}, 2'); a(f's_cselect_b32 s20, s20, s{G.P_WD}'); a(f's_cselect_b32 s21, s21, s{G.P_WD+1}')
    a(f's_mov_b32 s22, {D*F*2}'); a('s_mov_b32 s23, 0x20000')
    a(f's_movk_i32 {sPITCH}, 1280'); a(f's_cselect_b32 {sPITCH}, 3072, {sPITCH}')
    cold_scalars(a)
    RP.lane_maps(a, 'wg', vSG_, 'v4', 'v1', 'v2', 'v3')
    RP.lane_maps(a, 'wd', vSD_, 'v4', 'v1', 'v2', 'v3')
    a(f's_cmp_lt_u32 {sW}, 2'); a('s_cselect_b64 s[74:75], -1, 0'); a(f'v_cndmask_b32 {vSM_}, {vSD_}, {vSG_}, s[74:75]')

def attention_setup(a):
    a(f'v_and_b32 v2, 15, {vL}'); a(f'v_lshrrev_b32 v3, 4, {vL}')
    a('v_lshlrev_b32 v4, 2, v3'); a('v_sub_u32 v4, v2, v4')
    for r in range(4):
        a(f'v_subrev_u32 v5, {r}, v4')
        a('v_and_b32 v6, 0xfffffff1, v5'); a(f'v_cmp_eq_u32 {MCUR[r]}, 0, v6')
        a('v_add_u32 v5, 16, v5'); a('v_and_b32 v6, 0xfffffff1, v5'); a(f'v_cmp_eq_u32 {MPRV[r]}, 0, v6')
    a(f'v_cmp_eq_u32 {MG0}, 0, v3'); a(f'v_cmp_eq_u32 {MG1}, 1, v3')
    a('v_lshlrev_b32 v2, 4, v2')
    a('v_lshrrev_b32 v4, 1, v3'); a('v_lshl_add_u32 v4, v4, 8, v2'); a('v_and_b32 v5, 1, v3'); a(f'v_lshl_add_u32 {vO1}, v5, 3, v4')
    a('v_add_u32 v5, 5, v3'); a('v_lshrrev_b32 v6, 1, v5'); a('v_lshl_add_u32 v6, v6, 8, v2'); a('v_and_b32 v5, 1, v5'); a(f'v_lshl_add_u32 {vO2}, v5, 3, v6')
    a('v_mul_u32_u24 v7, 520, v3'); a('v_add_u32 v7, 512, v7'); a(f'v_add_u32 {vO3}, v7, v2')

def phase1(a, o):
    a.comment('================ phase 1')
    a.reset_counts()
    a(f'v_lshlrev_b32 {vT16}, 4, {vL}')
    a(f'v_add_u32 {vT16b}, {TILE_B}, {vT16}')
    a(f's_lshl_b32 s11, {sSG}, 3'); a(f's_lshl_b32 s12, {sW}, 1'); a('s_add_u32 s11, s11, s12')
    a(f's_mul_i32 s11, s11, {TILE_B}'); a(f's_add_u32 s78, s11, {XH_OFF}')
    xt = {}
    def xload(i):
        xt[(i, 0)] = a.vmem(f'buffer_load_dwordx4 {vr(xr(i,0),4)}, {vT16}, {WS}, s78 offen sc1')
        xt[(i, 1)] = a.vmem(f'buffer_load_dwordx4 {vr(xr(i,1),4)}, {vT16b}, {WS}, s78 offen sc1')
        a('s_add_u32 s78, s78, 1024')
    for i in range(2): xload(i)
    a(f'v_mov_b32 {vA}, {vT16}')
    a(f'v_lshrrev_b32 v1, 4, {vL}')
    a(f'v_and_b32 v2, 7, {vL}')
    a(f'v_lshlrev_b32 {vAV}, 7, v1'); a(f'v_lshl_add_u32 {vAV}, v2, 4, {vAV}')
    a(f'v_lshlrev_b32 {vGS}, 5, v1'); a(f'v_add_u32 {vGS}, {L_G1}, {vGS}')
    wt = {}; gt = {}
    def wread(t, i):
        v, off = waddr(t, i)
        wt[(t, i)] = a.lds(f'ds_read_b128 {ar(wf(i,t),4)}, {v} offset:{off}')
    for i in (0, 1):
        for op in gs_reads(i, vGS, gs(i)): gt[i] = a.lds(op)
    for t in range(8): wread(t, 0)
    xload(2); xload(3)
    a(f's_mul_i32 s11, {sW}, 38400')
    a(f'v_add_u32 {vHA}, s11, {vA}'); a(f'v_add_u32 {vHAV}, s11, {vAV}')
    a(f's_mul_i32 s11, {sW}, 640'); a(f'v_add_u32 {vHG}, s11, {vGS}')
    a(f's_lshl_b32 s11, {sSG}, 3'); a('s_sub_u32 s12, s11, 1'); a(f's_cmp_eq_u32 {sSG}, 0'); a('s_cselect_b32 s11, 0, s12')
    a(f's_mul_i32 s11, s11, {TILE_B}'); a(f's_mul_i32 s12, {sW}, 5120'); a('s_add_u32 s11, s11, s12'); a(f's_add_u32 s80, s11, {XH_OFF}')
    a(f's_mul_i32 s83, {sM}, 153600'); a(f's_add_u32 s83, s83, {WQ_OFF}'); a(f's_lshl_b32 s90, {sW}, 10'); a('s_add_u32 s83, s83, s90')
    xload(4); xload(5)
    cold_setup(a)
    xload(6); xload(7)
    attention_setup(a)
    a(f'v_bfe_u32 v1, {vL}, 1, 4'); a('v_lshlrev_b32 v1, 4, v1')
    a(f'v_and_b32 v2, 1, {vL}'); a('v_lshl_add_u32 v1, v2, 3, v1'); a(f's_and_b32 s11, {sM}, 7'); a('v_add_u32 v1, s11, v1')
    a('v_lshl_add_u32 v1, v1, 2, 1'); a('v_lshlrev_b32 v1, 7, v1'); a(f'v_add_u32 {vWOF}, {FLAG_OFF}, v1')
    a.wait_vm(xt[(0, 1)]); a.wait_lg(gt[0])
    for T in (0, 1):
        for op in transform_ops(xr(0, T), hb(0, T), gs(0)): a(op)
    xload(DEPTH)
    stamp(a, 5)
    dma_tok = {}
    def wq_dma(g, t):
        q4 = 4*t
        if t < 7:
            a(f's_add_u32 m0, s90, {g*30720+1024*q4}'); a(f's_add_u32 s91, s83, {g*30720+1024*q4}')
        else:
            a(f's_and_b32 s91, s90, 1024'); a(f's_add_u32 m0, s91, {g*30720+1024*28}')
            a('s_sub_u32 s91, s91, s90'); a('s_add_u32 s91, s91, s83'); a(f's_add_u32 s91, s91, {g*30720+1024*28}')
        dma_tok[g] = a.vmem(f'buffer_load_dwordx4 {vT16}, {WS}, s91 offen sc1 lds')
    bar = {3: [], 7: [4], 14: []}
    hw = {}; hg = {}; ht = []
    st = dict(r=None, cold=None)
    for i in range(20):
        nxt = i+1 < 20
        u = i-H0
        hal = 0 <= u < 5
        if getattr(o, 'fine', 0) == 1 and i > 0: stamp(a, 30+i)
        if i in bar:
            for g in bar[i]: a.wait_vm(dma_tok[g])
            if i == 14: flags_check(a, st['r'], vWOF, vFP, 2)
            a('s_barrier')
            if i == 14:
                a(f's_and_b32 s11, {sM}, 7'); a('s_mul_i32 s84, s11, 102400'); a(f's_mul_i32 s85, {sW}, 25600'); a('s_add_u32 s84, s84, s85'); a(f's_add_u32 s84, s84, {WO_OFF}')
        mf = []
        for t in range(8): mf += [('m', t, 0), ('m', t, 1)]
        if hal: mf += [('h', n, 0) for n in range(6)]
        fill = []
        if hal: fill += ['XH']+transform_ops(HRAW+4*u, HH, HGS)
        if nxt: fill += ['X0']+transform_ops(xr(i+1, 0), hb(i+1, 0), gs(i+1))+transform_ops(xr(i+1, 1), hb(i+1, 1), gs(i+1))
        dsq = []
        if i+2 < 20: dsq += gs_reads(i+2, vGS, gs(i+2))
        hnext = H0 <= i+1 < H0+5
        vm = []
        if i < 4: vm += [lambda t=t: wq_dma(4, t) for t in range(2*i, 2*i+2)]
        if i == 4:
            def hl():
                for uu in range(5):
                    if uu == 4: a('s_add_u32 s80, s80, 4096')
                    ht.append(a.vmem(f'buffer_load_dwordx4 {vr(HRAW+4*uu,4)}, {vT16}, {WS}, s80 offen offset:{1024*(uu % 4)} sc1'))
            vm.append(hl)
        if i >= 14:
            for t in range([0, 4, 8, 12, 15, 20][i-14], [4, 8, 12, 15, 20, 25][i-14]):
                def wo(t=t):
                    a(f's_add_u32 m0, s85, {1024*t}')
                    a.vmem(f'buffer_load_dwordx4 {vT16}, {WS}, s84 offen sc1 lds')
                    a('s_add_u32 s84, s84, 1024')
                vm.append(wo)
        if i == 17:
            from gen_p2 import phase2_prefetch
            vm.append(lambda: phase2_prefetch(a, o))
        if i == 1: vm.append(lambda: flag_store(a, 2))
        if i == 8: vm.append(lambda: cpf(a, 'L_attn'))
        if i == 16: vm.append(lambda: cpf(a, 'L_p2', -1024))
        if i == C0-1:
            def rl(): st['r'] = flags_issue(a, vWOF, vFP)
            vm.append(rl)
        if C0 <= i < C0+4:
            j = i-C0
            srd_, pitch, vs = [(SA, 3072, vSG_), (SB, 3072, vSG_), (SMIX, sPITCH, vSM_), (SC_, 1280, vSD_)][j]
            def cl(srd_=srd_, pitch=pitch, vs=vs, j=j):
                st['cold'] = RP.unit_loads(a, srd_, sKC[j], pitch, vs, COLD+8*j, areg=True, stmp='s86')
            vm.append(cl)
        nslots = len(mf)
        nfill = len([f for f in fill if not f.startswith('X')])
        fi = 0; done = 0
        step = max(1, (nslots-2)//max(1, len(vm)))
        vslots = [min(2+step*k, nslots-1) for k in range(len(vm))]
        for k, (kind, t, T) in enumerate(mf):
            if kind == 'm':
                if T == 0: a.wait_lg(wt[(t, i)])
                c = '0' if i == 0 else vr(acc(T, t), 4)
                if t < 5: a(f'v_mfma_f32_16x16x32_bf16 {vr(acc(T,t),4)}, {ar(wf(i,t),4)}, {vr(hb(i,T),4)}, {c}')
                else:     a(f'v_mfma_f32_16x16x32_bf16 {vr(acc(T,t),4)}, {vr(hb(i,T),4)}, {ar(wf(i,t),4)}, {c}')
                if nxt:
                    if k == 0 and (i+1) % 8 == 0:
                        for v in (vA, vAV): a(f'v_add_u32 {v}, 61440, {v}')
                    if T == 1: wread(t, i+1)
            else:
                tt = HT[t]
                a.wait_lg(hw[(t, u)])
                c = '0' if u == 0 else ar(AHACC+4*t, 4)
                if tt < 5: a(f'v_mfma_f32_16x16x32_bf16 {ar(AHACC+4*t,4)}, {ar(hwf(u,t),4)}, {vr(HH,4)}, {c}')
                else:      a(f'v_mfma_f32_16x16x32_bf16 {ar(AHACC+4*t,4)}, {vr(HH,4)}, {ar(hwf(u,t),4)}, {c}')
                if u+1 < 5:
                    v, off = waddr(tt, u+1, halo=True)
                    hw[(t, u+1)] = a.lds(f'ds_read_b128 {ar(hwf(u+1,t),4)}, {v} offset:{off}')
            if dsq and k % 2 == 0 and k < 8:
                gt[i+2] = a.lds(dsq.pop(0))
            lastk = nslots-1
            want = min(nfill, ((k+1)*nfill+lastk)//(lastk+1)) if k < lastk else nfill
            while done < want and fi < len(fill):
                f = fill[fi]; fi += 1
                if f == 'X0': a.wait_vm(xt[(i+1, 1)]); a.wait_lg(gt[i+1])
                elif f == 'XH': a.wait_vm(ht[u]); a.wait_lg(hg[u])
                else: a(f); done += 1
            for vi, vs_ in enumerate(vslots):
                if vs_ == k: vm[vi]()
        if hnext:
            un = i+1-H0
            for op in gs_reads(un, vHG, HGS): hg[un] = a.lds(op)
            if un == 0:
                for n in range(6):
                    v, off = waddr(HT[n], 0, halo=True)
                    hw[(n, 0)] = a.lds(f'ds_read_b128 {ar(hwf(0,n),4)}, {v} offset:{off}')
        if i+1+DEPTH < 20: xload(i+1+DEPTH)
    stamp(a, 6)
    attention(a, o, st)

def cold_finish(a, o):
    a(f's_mul_i32 s11, {sM}, 245760'); a(f's_add_u32 s11, s11, {WGU_OFF}')
    a(f'v_lshrrev_b32 v1, 5, {vL}'); a('v_mul_u32_u24 v1, 81920, v1'); a(f'v_and_b32 v2, 31, {vL}'); a('v_lshl_add_u32 v10, v2, 4, v1'); a('v_add_u32 v10, s11, v10')
    a(f'v_lshlrev_b32 v11, 4, {vL}'); a(f'v_add_u32 v11, {2*81920}, v11'); a('v_add_u32 v11, s11, v11')
    a(f's_and_b32 s12, {sM}, 7'); a('s_mul_i32 s12, s12, 245760'); a(f's_add_u32 s12, s12, {WD_OFF}')
    a(f'v_lshrrev_b32 v1, 4, {vL}'); a('v_lshlrev_b32 v1, 10, v1'); a(f'v_and_b32 v2, 15, {vL}'); a('v_lshl_add_u32 v12, v2, 4, v1'); a('v_add_u32 v12, s12, v12')
    a(f'v_lshlrev_b32 v13, 4, {vL}'); a('v_add_u32 v13, 4096, v13'); a('v_add_u32 v13, s12, v13')
    a('v_mov_b32 v3, 0x40000000')
    a(f'v_cmp_gt_u32 vcc, 32, {vL}'); a('v_cndmask_b32 v11, v3, v11, vcc')
    a(f'v_cmp_gt_u32 vcc, 16, {vL}'); a('v_cndmask_b32 v13, v3, v13, vcc')
    a(f's_cmp_eq_u32 {sW}, 1'); a('s_cselect_b32 s13, 1024, 0'); a('v_add_u32 v14, s13, v10'); a('v_add_u32 v15, s13, v11')
    a(f's_cmp_lt_u32 {sW}, 2'); a('s_cselect_b64 s[74:75], -1, 0'); a('v_cndmask_b32 v14, v12, v14, s[74:75]'); a('v_cndmask_b32 v15, v13, v15, s[74:75]')
    a(f's_mul_i32 s13, {sW}, 5120'); a(f's_add_u32 s13, s13, {L_BNC}')
    a(f'v_lshl_add_u32 v4, {vL}, 5, s13'); a(f'v_lshl_add_u32 v5, {vL}, 4, s13')
    R = 84; O = 116
    dest = [('v10', 'v11', 0), ('v10', 'v11', 1024), ('v14', 'v15', 0), ('v12', 'v13', 0)]
    last = None
    for rnd in range(2):
        for j in (2*rnd, 2*rnd+1):
            for e in range(8): a(f'v_accvgpr_read_b32 {vr(R+8*j+e)}, {ar(COLD+8*j+e)}')
            for d in range(4):
                a(f'v_perm_b32 {vr(O+8*j+d)}, {vr(R+8*j+2*d+1)}, {vr(R+8*j+2*d)}, {RP.SEL_LO}')
                a(f'v_perm_b32 {vr(O+8*j+4+d)}, {vr(R+8*j+2*d+1)}, {vr(R+8*j+2*d)}, {RP.SEL_HI}')
            a.lds(f'ds_write_b128 v4, {vr(O+8*j,4)} offset:{2048*(j & 1)}')
            a.lds(f'ds_write_b128 v4, {vr(O+8*j+4,4)} offset:{2048*(j & 1)+16}')
        tk = {}
        for j in (2*rnd, 2*rnd+1):
            a.lds(f'ds_read_b128 {vr(R+8*j,4)}, v5 offset:{2048*(j & 1)}')
            tk[j] = a.lds(f'ds_read_b128 {vr(R+8*j+4,4)}, v5 offset:{2048*(j & 1)+1024}')
        for j in (2*rnd, 2*rnd+1):
            if j < 2: RP.unit_dest_scalar(a, 'wg', sKC[j], 's86', 's87')
            elif j == 2:
                RP.unit_dest_scalar(a, 'wg', sKC[2], 's86', 's87'); RP.unit_dest_scalar(a, 'wd', sKC[2], 's88', 's87')
                a(f's_cmp_lt_u32 {sW}, 2'); a('s_cselect_b32 s86, s86, s88')
            else: RP.unit_dest_scalar(a, 'wd', sKC[3], 's86', 's87')
            a.wait_lg(tk[j])
            va, vb, off = dest[j]
            a.vmem(f'buffer_store_dwordx4 {vr(R+8*j,4)}, {va}, {WS}, s86 offen offset:{off} sc1')
            last = a.vmem(f'buffer_store_dwordx4 {vr(R+8*j+4,4)}, {vb}, {WS}, s86 offen offset:{off} sc1')
    return last

L_EX = 102400
L_HP = 114688

def cross_op(a, op, v, t0, t1):
    for sw in ('v_permlane16_swap_b32', 'v_permlane32_swap_b32'):
        a(f'v_mov_b32 {t0}, {v}'); a(f'v_mov_b32 {t1}, {v}')
        a(f'{sw} {t0}, {t1}')
        a(f'{op} {v}, {t0}, {t1}')

def attention(a, o, st):
    a.label('L_attn')
    Q = 84; K = 100; V = 124; SS = 148; PF = 180; OO = 196; ONE = 212; NEG = 216; CZ = 224; MX = 220
    t0, t1 = 'v217', 'v218'
    def q(T, h): return Q+(T*2+h)*4
    def kf(U, h): return K+(U*2+h)*4
    def vf(T, x): return V+(T*3+x)*4
    def ss(T, h): return SS+(T*2+h)*8
    def pf(T, h): return PF+(T*2+h)*4
    def pk(dst, src):
        a(f'v_cvt_pk_bf16_f32 {vr(dst)}, {vr(src)}, {vr(src+1)}')
        a(f'v_cvt_pk_bf16_f32 {vr(dst+1)}, {vr(src+2)}, {vr(src+3)}')
    def kpack(U, ka, kb, c):
        pk(kf(U, 0), ka); pk(kf(U, 1), kb)
        for d in (0, 1):
            a(f'v_cvt_pk_bf16_f32 {t0}, {vr(c+2*d)}, {vr(c+2*d+1)}')
            a(f'v_mov_b32 {vr(kf(U,0)+2+d)}, {t0}')
            a(f'v_permlane32_swap_b32 {t0}, {vr(kf(U,0)+2+d)}')
            a(f'v_mov_b32 {vr(kf(U,1)+2+d)}, {vr(kf(U,0)+2+d)}')
    def qpack(T):
        pk(q(T, 0), acc(T, 0)); pk(q(T, 1), acc(T, 1))
        for d in (0, 1):
            a(f'v_cvt_pk_bf16_f32 {t0}, {vr(acc(T,4)+2*d)}, {vr(acc(T,4)+2*d+1)}')
            a(f'v_cndmask_b32 {vr(q(T,0)+2+d)}, 0, {t0}, {MG0}')
            a(f'v_cndmask_b32 {vr(q(T,1)+2+d)}, 0, {t0}, {MG1}')
    a(f'v_mov_b32 v{NEG}, 0xf149f2ca')
    for r in range(4): a(f'v_mov_b32 {vr(ONE+r)}, 0x3f803f80')
    a(f's_or_b32 s11, {sSG}, {sW}'); a('s_cmp_eq_u32 s11, 0'); a('s_cselect_b32 s11, 0xf149f2ca, 0')
    for r in range(4): a(f'v_mov_b32 {vr(CZ+r)}, s11')
    a(f's_mul_i32 s11, {sW}, 6144'); a(f's_add_u32 s11, s11, {L_HP}'); a(f'v_add_u32 v1, s11, {vT16}')
    a(f's_mul_i32 s11, {sW}, 3584'); a(f's_add_u32 s11, s11, {L_EX}'); a(f'v_add_u32 v2, s11, {vT16}')
    a(f'v_lshlrev_b32 v5, 3, {vL}'); a('v_add_u32 v5, s11, v5')
    a(f's_lshl_b32 s11, {sSG}, 3'); a(f's_lshl_b32 s12, {sW}, 1'); a('s_add_u32 s11, s11, s12')
    a(f's_mul_i32 s11, s11, {TILE_B}'); a(f's_mul_i32 s12, {sM}, 1280'); a('s_add_u32 s11, s11, s12')
    a(f's_add_u32 s76, s11, {O_OFF}'); a(f's_add_u32 s77, s76, {TILE_B}')
    a(f's_mov_b32 s79, {hex(f2u((DH**-0.5)*1.4426950408889634))}')
    stamp(a, 7)
    a('s_barrier')
    def wo_piece(n=1): pass
    for n in range(6): a.lds(f'ds_write_b128 v1, {ar(AHACC+4*n,4)} offset:{1024*n}')
    kpack(2, acc(1, 2), acc(1, 3), acc(1, 4))
    for x in range(3): pk(vf(1, x)+2, acc(1, 5+x))
    wo_piece()
    Lskip = newlab('noex')
    a(f's_cmp_eq_u32 {sW}, 3'); a(f's_cbranch_scc1 {Lskip}')
    a(f'ds_write_b128 v2, {vr(kf(2,0),4)}')
    a(f'ds_write_b128 v2, {vr(kf(2,1),4)} offset:1024')
    for x in range(3): a(f'ds_write_b64 v5, {vr(vf(1,x)+2,2)} offset:{2048+512*x}')
    a.label(Lskip)
    kpack(1, acc(0, 2), acc(0, 3), acc(0, 4))
    wo_piece()
    qpack(1)
    def s_mfma(T):
        for h in (0, 1):
            a(f'v_mfma_f32_16x16x32_bf16 {vr(ss(T,h),4)}, {vr(kf(T,h),4)}, {vr(q(T,h),4)}, {vr(CZ,4) if T == 0 else "0"}')
            a(f'v_mfma_f32_16x16x32_bf16 {vr(ss(T,h)+4,4)}, {vr(kf(T+1,h),4)}, {vr(q(T,h),4)}, 0')
    s_mfma(1)
    for x in range(3): pk(vf(0, x)+2, acc(0, 5+x)); pk(vf(1, x), acc(0, 5+x))
    wo_piece()
    qpack(0)
    wo_piece()
    def softmax(T):
        for h in (0, 1):
            for r in range(4):
                a(f'v_cndmask_b32 {vr(ss(T,h)+r)}, v{NEG}, {vr(ss(T,h)+r)}, {MPRV[r]}')
                a(f'v_cndmask_b32 {vr(ss(T,h)+4+r)}, v{NEG}, {vr(ss(T,h)+4+r)}, {MCUR[r]}')
        for h in (0, 1):
            b = ss(T, h); m = vr(MX+h)
            a(f'v_max3_f32 {m}, {vr(b)}, {vr(b+1)}, {vr(b+2)}')
        for h in (0, 1):
            b = ss(T, h); m = vr(MX+h); a(f'v_max3_f32 {m}, {m}, {vr(b+3)}, {vr(b+4)}')
        for h in (0, 1):
            b = ss(T, h); m = vr(MX+h); a(f'v_max3_f32 {m}, {m}, {vr(b+5)}, {vr(b+6)}')
        for h in (0, 1):
            b = ss(T, h); m = vr(MX+h); a(f'v_max_f32 {m}, {m}, {vr(b+7)}')
        wo_piece()
        for sw in ('v_permlane16_swap_b32', 'v_permlane32_swap_b32'):
            for h in (0, 1):
                a(f'v_mov_b32 {vr(OO+2*h)}, {vr(MX+h)}'); a(f'v_mov_b32 {vr(OO+2*h+1)}, {vr(MX+h)}')
            for h in (0, 1): a(f'{sw} {vr(OO+2*h)}, {vr(OO+2*h+1)}')
            for h in (0, 1): a(f'v_max_f32 {vr(MX+h)}, {vr(OO+2*h)}, {vr(OO+2*h+1)}')
        for h in (0, 1): a(f'v_mul_f32 {vr(MX+h)}, s79, {vr(MX+h)}')
        for h in (0, 1):
            b = ss(T, h)
            for r in range(8): a(f'v_fma_f32 {vr(b+r)}, {vr(b+r)}, s79, -{vr(MX+h)}')
        wo_piece()
        for h in (0, 1):
            b = ss(T, h)
            for r in range(8): a(f'v_exp_f32 {vr(b+r)}, {vr(b+r)}')
        for h in (0, 1):
            b = ss(T, h)
            for d in range(4): a(f'v_cvt_pk_bf16_f32 {vr(pf(T,h)+d)}, {vr(b+2*d)}, {vr(b+2*d+1)}')
    OB = {1: 20, 0: 44}
    def pv_mfma(T):
        b = OB[T]
        a(f'v_mfma_f32_16x16x32_bf16 {vr(b,4)}, {vr(ONE,4)}, {vr(pf(T,0),4)}, 0')
        a(f'v_mfma_f32_16x16x32_bf16 {vr(b+4,4)}, {vr(ONE,4)}, {vr(pf(T,1),4)}, 0')
        a(f'v_mfma_f32_16x16x32_bf16 {vr(b+8,4)}, {vr(vf(T,0),4)}, {vr(pf(T,0),4)}, 0')
        a(f'v_mfma_f32_16x16x32_bf16 {vr(b+12,4)}, {vr(vf(T,1),4)}, {vr(pf(T,1),4)}, 0')
        a(f'v_mfma_f32_16x16x32_bf16 {vr(b+16,4)}, {vr(vf(T,2),4)}, {vr(pf(T,0),4)}, 0')
        a(f'v_mfma_f32_16x16x32_bf16 {vr(b+20,4)}, {vr(vf(T,2),4)}, {vr(pf(T,1),4)}, 0')
    def finish(T):
        b = OB[T]; so = 's77' if T == 1 else 's76'
        a(f'v_rcp_f32 {vr(b)}, {vr(b)}'); a(f'v_rcp_f32 {vr(b+4)}, {vr(b+4)}')
        for r in range(4): a(f'v_cndmask_b32 {vr(b+16+r)}, {vr(b+20+r)}, {vr(b+16+r)}, {MG0}')
        a(f'v_cndmask_b32 {vr(b+2)}, {vr(b+4)}, {vr(b)}, {MG0}')
        for h in (0, 2):
            a(pkb('mul', b+8+h, b+8+h, ('b', b))); a(pkb('mul', b+12+h, b+12+h, ('b', b+4))); a(pkb('mul', b+16+h, b+16+h, ('b', b+2)))
        pk(b+8, b+8); pk(b+12, b+12); pk(b+16, b+16)
        a.vmem(f'buffer_store_dwordx2 {vr(b+8,2)}, {vO1}, {WS}, {so} offen sc1')
        a.vmem(f'buffer_store_dwordx2 {vr(b+12,2)}, {vO2}, {WS}, {so} offen sc1')
        a('s_mov_b32 exec_hi, 0')
        t = a.vmem(f'buffer_store_dwordx2 {vr(b+16,2)}, {vO3}, {WS}, {so} offen sc1')
        a('s_mov_b32 exec_hi, -1')
        return t
    softmax(1)
    a.wait_all_lg()
    a('s_barrier')
    stamp(a, 8)
    Lw0 = newlab('w0'); Lj = newlab('prevj')
    a(f's_cmp_eq_u32 {sW}, 0'); a(f's_cbranch_scc1 {Lw0}')
    a('v_subrev_u32 v2, 3584, v2'); a('v_subrev_u32 v5, 3584, v5')
    a(f'ds_read_b128 {vr(kf(0,0),4)}, v2')
    a(f'ds_read_b128 {vr(kf(0,1),4)}, v2 offset:1024')
    for x in range(3): a(f'ds_read_b64 {vr(vf(0,x),2)}, v5 offset:{2048+512*x}')
    pv_mfma(1)
    a('s_nop 7')
    a(f's_branch {Lj}')
    a.label(Lw0)
    a(f'v_add_u32 v1, {L_HP}, {vT16}')
    R = 148+16
    HA = 228
    def hdst(n): return (228+4*n) if n < 4 else (196+4*(n-4))
    for n in range(6): a(f'ds_read_b128 {vr(hdst(n),4)}, v1 offset:{1024*n}')
    pv_mfma(1)
    for w in range(1, 4):
        for n in range(6): a(f'ds_read_b128 {vr(148+4*n,4)}, v1 offset:{6144*w+1024*n}')
        a('s_waitcnt lgkmcnt(0)')
        for n in range(6):
            for h in (0, 2): a(pkb('add', hdst(n)+h, hdst(n)+h, 148+4*n+h))
    kpack(0, hdst(0), hdst(1), hdst(2))
    for x in range(3): pk(vf(0, x), hdst(3+x))
    a.label(Lj)
    finish(1)
    a('s_waitcnt lgkmcnt(0)'); a.lg = []
    s_mfma(0)
    wo_piece(2)
    softmax(0)
    pv_mfma(0)
    wo_piece(2)
    last = finish(0)
    stamp(a, 9)
    cold_finish(a, o)
    from gen_p2 import phase2_setup
    wo_piece(3)
    phase2_setup(a, o)
    a.wait_vm(last)
    flag_store(a, 3)
    stamp(a, 10)
    wo_piece(25)
```

```python
from layout import *
import gen as G
from gen import flags_issue, flags_check, pkb, cpf, vr, ar, stamp, set_exec, flag_store, poll_flags, WS, SA, SB, SC_, sW, sSG, sM, sN, sROT, sFL, vL, f2u, srd, newlab

X1A = 240

def multi_gather(a, o, colbases, V):
    L = newlab('mg'); Ld = newlab('mgd')
    set_exec(a, (1 << 40)-1)
    a(f'v_lshlrev_b32 v5, 4, {vL}')
    a(f's_mov_b32 s73, {o.spin}')
    a.label(L)
    for n, cb in enumerate(colbases):
        a(f's_lshl_b32 s12, {cb}, 3'); a(f's_add_u32 s12, s12, {GRAN_OFF}')
        for kq in range(4):
            a(f'buffer_load_dwordx4 {vr(V+16*n+4*kq,4)}, v5, {WS}, s12 offen sc1')
            if kq < 3: a(f's_add_u32 s12, s12, {3840*8}')
    a('s_waitcnt vmcnt(0)'); a.vm = []
    first = True
    for n in range(len(colbases)):
        for kq in range(4):
            b = V+16*n+4*kq
            if first:
                a(f'v_max_u32 v6, {vr(b+1)}, {vr(b+3)}'); a(f'v_min_u32 v7, {vr(b+1)}, {vr(b+3)}'); first = False
            else:
                a(f'v_max3_u32 v6, v6, {vr(b+1)}, {vr(b+3)}'); a(f'v_min3_u32 v7, v7, {vr(b+1)}, {vr(b+3)}')
    a(f'v_cmp_ne_u32 vcc, {sN}, v6'); a(f'v_cmp_ne_u32 s[74:75], {sN}, v7'); a('s_or_b64 vcc, vcc, s[74:75]')
    a('s_sub_u32 s73, s73, 1'); a('s_cmp_eq_u32 s73, 0'); a(f's_cbranch_scc1 {Ld}'); a(f's_cbranch_vccnz {L}')
    a.label(Ld)
    for n in range(len(colbases)):
        b = V+16*n
        for h in (0, 2):
            a(f'v_add_f32 {vr(b+h)}, {vr(b+h)}, {vr(b+4+h)}'); a(f'v_add_f32 {vr(b+8+h)}, {vr(b+8+h)}, {vr(b+12+h)}')
            a(f'v_add_f32 {vr(b+h)}, {vr(b+h)}, {vr(b+8+h)}')
        a(f'v_cvt_pk_bf16_f32 {vr(b+1)}, {vr(b)}, {vr(b+2)}')

def plus_one(a, p, cond=None):
    a(f'v_lshlrev_b32 v6, 16, {vr(p)}'); a(f'v_and_b32 v7, 0xffff0000, {vr(p)}')
    a('v_add_f32 v6, 1.0, v6'); a('v_add_f32 v7, 1.0, v7')
    a(f'v_cvt_pk_bf16_f32 v6, v6, v7')
    if cond: a(f'v_cndmask_b32 {vr(p)}, {vr(p)}, v6, {cond}')
    else: a(f'v_mov_b32 {vr(p)}, v6')

sCB, sRB, sMAT, sKQ, sCK = 's80', 's81', 's52', 's53', 's54'
GA_ = 0
XA_ = 32
OF = 64

def gather_bases(a):
    a(f's_mul_i32 s11, {sCB}, 80')
    a('s_movk_i32 s96, 3200'); a(f's_cmp_eq_u32 {sW}, 0'); a('s_cselect_b32 s96, 1280, s96'); a(f's_cmp_eq_u32 {sW}, 1'); a('s_cselect_b32 s96, 2560, s96'); a('s_add_u32 s96, s96, s11')
    a('s_movk_i32 s97, 1920'); a(f's_cmp_lt_u32 {sW}, 2'); a('s_cselect_b32 s97, 2560, s97'); a(f's_and_b32 s11, {sW}, 1'); a('s_mul_i32 s11, s11, 80'); a('s_add_u32 s97, s97, s11')
    a(f's_mul_i32 s11, {sKQ}, 160'); a('s_cmp_lt_u32 s9, 192'); a('s_cselect_b32 s11, s11, 0'); a('s_add_u32 s97, s97, s11')

def phase2_prefetch(a, o):
    a(f's_and_b32 {sCB}, {sM}, 7'); a(f's_lshr_b32 {sRB}, {sM}, 3')
    a(f's_mul_i32 {sMAT}, s9, 683'); a(f's_lshr_b32 {sMAT}, {sMAT}, 16')
    a(f's_mul_i32 s11, {sMAT}, 96'); a('s_sub_u32 s11, s9, s11')
    a(f's_mul_i32 {sKQ}, s11, 2731'); a(f's_lshr_b32 {sKQ}, {sKQ}, 16')
    a(f's_mul_i32 s12, {sKQ}, 24'); a(f's_sub_u32 {sCK}, s11, s12')
    gather_bases(a)
    a(f'v_lshlrev_b32 v5, 4, {vL}')
    set_exec(a, (1 << 40)-1)
    for n, cb in enumerate(('s96', 's97')):
        a(f's_lshl_b32 s12, {cb}, 3'); a(f's_add_u32 s12, s12, {GRAN_OFF}')
        for kq in range(4):
            a.vmem(f'buffer_load_dwordx4 {ar(GA_+16*n+4*kq,4)}, v5, {WS}, s12 offen sc1')
            if kq < 3: a(f's_add_u32 s12, s12, {3840*8}')
    set_exec(a, (1 << 64)-1)
    srd(a, 48, G.P_X, S*D*2)
    a(f's_lshl_b32 s11, {sSG}, 7'); a(f's_lshl_b32 s12, {sRB}, 6'); a('s_add_u32 s11, s11, s12'); a(f's_lshl_b32 s12, {sW}, 4'); a('s_add_u32 s11, s11, s12')
    a('s_mul_i32 s11, s11, 1280'); a(f's_mul_i32 s12, {sCB}, 160'); a('s_add_u32 s11, s11, s12')
    a(f'v_and_b32 v2, 15, {vL}'); a(f'v_lshrrev_b32 v3, 4, {vL}')
    a('v_mul_u32_u24 v5, 1280, v2'); a('v_lshl_add_u32 v5, v3, 3, v5')
    for nt in range(5): a.vmem(f'buffer_load_dwordx2 {ar(XA_+2*nt,2)}, v5, {SB}, s11 offen offset:{32*nt}')

def ut_staging(a):
    a(f's_cmp_eq_u32 {sMAT}, 0')
    a(f's_cselect_b32 s44, s{G.P_WG}, s{G.P_WU}'); a(f's_cselect_b32 s45, s{G.P_WG+1}, s{G.P_WU+1}')
    a(f's_mov_b32 s46, {D*F*2}'); a('s_mov_b32 s47, 0x20000')
    a(f'v_lshrrev_b32 v5, 3, {vL}'); a(f'v_and_b32 v6, 7, {vL}'); a('v_mul_u32_u24 v5, 3072, v5'); a('v_lshl_add_u32 v5, v6, 4, v5')
    a(f's_mul_i32 s12, {sKQ}, 160'); a(f's_mul_i32 s13, {sW}, 40'); a('s_add_u32 s12, s12, s13'); a('s_mul_i32 s12, s12, 3072')
    a(f's_lshl_b32 s13, {sCK}, 7'); a('s_add_u32 s12, s12, s13')
    a('s_cmp_lt_u32 s9, 192'); a('s_cselect_b32 s12, s12, 0x40000000')
    a(f's_mul_i32 s13, {sW}, 5120')
    for t in range(5):
        a(f's_add_u32 m0, s13, {L_UTSTG+1024*t}')
        a.vmem(f'buffer_load_dwordx4 v5, {SA}, s12 offen lds')
        if t < 4: a(f's_add_u32 s12, s12, {8*3072}')

def phase2_vectors(a, o):
    V = 32
    set_exec(a, (1 << 40)-1)
    for i in range(32): a(f'v_accvgpr_read_b32 {vr(V+i)}, {ar(GA_+i)}')
    Lr = newlab('mg'); Ld = newlab('mgd'); Lc = newlab('mgc')
    a(f's_mov_b32 s73, {o.spin}')
    a.label(Lc)
    for q in range(8):
        b = V+4*q
        if q == 0: a(f'v_max_u32 v6, {vr(b+1)}, {vr(b+3)}'); a(f'v_min_u32 v7, {vr(b+1)}, {vr(b+3)}')
        else: a(f'v_max3_u32 v6, v6, {vr(b+1)}, {vr(b+3)}'); a(f'v_min3_u32 v7, v7, {vr(b+1)}, {vr(b+3)}')
    a(f'v_cmp_ne_u32 vcc, {sN}, v6'); a(f'v_cmp_ne_u32 s[74:75], {sN}, v7'); a('s_or_b64 vcc, vcc, s[74:75]')
    a(f's_cbranch_vccz {Ld}')
    a('s_sub_u32 s73, s73, 1'); a('s_cmp_eq_u32 s73, 0'); a(f's_cbranch_scc1 {Ld}')
    gather_bases(a)
    a(f'v_lshlrev_b32 v5, 4, {vL}')
    for n, cb in enumerate(('s96', 's97')):
        a(f's_lshl_b32 s12, {cb}, 3'); a(f's_add_u32 s12, s12, {GRAN_OFF}')
        for kq in range(4):
            a(f'buffer_load_dwordx4 {vr(V+16*n+4*kq,4)}, v5, {WS}, s12 offen sc1')
            if kq < 3: a(f's_add_u32 s12, s12, {3840*8}')
    a('s_waitcnt vmcnt(0)')
    a(f's_branch {Lc}')
    a.label(Ld)
    for n in range(2):
        b = V+16*n
        for h in (0, 2):
            a(f'v_add_f32 {vr(b+h)}, {vr(b+h)}, {vr(b+4+h)}'); a(f'v_add_f32 {vr(b+8+h)}, {vr(b+8+h)}, {vr(b+12+h)}')
            a(f'v_add_f32 {vr(b+h)}, {vr(b+h)}, {vr(b+8+h)}')
        a(f'v_cvt_pk_bf16_f32 {vr(b+1)}, {vr(b)}, {vr(b+2)}')
    a(f's_cmp_eq_u32 {sW}, 1'); a('s_cselect_b64 s[74:75], -1, 0')
    plus_one(a, V+1, 's[74:75]')
    a(f's_cmp_lt_u32 {sW}, 2'); a('s_cselect_b64 s[74:75], -1, 0')
    plus_one(a, V+17, 's[74:75]')
    a(f'v_lshlrev_b32 {vr(V+2)}, 16, {vr(V+1)}'); a(f'v_and_b32 {vr(V+3)}, 0xffff0000, {vr(V+1)}')
    a(f's_min_u32 s11, {sW}, 2'); a('s_mul_i32 s11, s11, 320'); a(f's_add_u32 s11, s11, {L_VEC}')
    a(f'v_lshlrev_b32 v5, 3, {vL}'); a('v_add_u32 v5, s11, v5')
    a.lds(f'ds_write_b64 v5, {vr(V+2,2)}')
    a(f's_lshr_b32 s11, {sW}, 1'); a('s_mul_i32 s11, s11, 384'); a(f's_and_b32 s12, {sW}, 1'); a('s_mul_i32 s12, s12, 160'); a('s_add_u32 s11, s11, s12'); a(f's_add_u32 s11, s11, {L_VG}')
    a(f'v_lshlrev_b32 v5, 2, {vL}'); a('v_add_u32 v5, s11, v5')
    a.lds(f'ds_write_b32 v5, {vr(V+17)}')
    set_exec(a, (1 << 64)-1)
    a.wait_all_lg()

def ut_job(a):
    a(f'v_and_b32 v2, 15, {vL}'); a(f'v_lshrrev_b32 v3, 4, {vL}')
    a('v_lshrrev_b32 v6, 2, v2'); a('v_lshl_add_u32 v6, v3, 3, v6'); a('v_lshlrev_b32 v6, 7, v6'); a('v_and_b32 v7, 3, v2'); a('v_lshl_add_u32 v6, v7, 3, v6')
    a(f's_lshl_b32 s11, {sW}, 5'); a(f's_add_u32 s11, s11, {L_UTSTG}'); a('v_add_u32 v6, s11, v6')
    a('v_lshrrev_b32 v7, 3, v2'); a('v_mul_u32_u24 v7, 384, v7'); a('v_lshl_add_u32 v7, v3, 4, v7'); a(f'v_add_u32 v7, {L_VG}, v7')
    UA = 228; WF = 208; VF = 188
    tk = []
    for s in range(5):
        a.lds(f'ds_read_b128 {vr(VF+4*s,4)}, v7 offset:{64*s}')
        a.lds(f'ds_read_b64_tr_b16 {vr(WF+4*s,2)}, v6 offset:{4096*s}')
        tk.append(a.lds(f'ds_read_b64_tr_b16 {vr(WF+4*s+2,2)}, v6 offset:{4096*s+512}'))
    for s in range(5):
        a.wait_lg(tk[s])
        a(f'v_mfma_f32_16x16x32_bf16 {vr(UA,4)}, {vr(WF+4*s,4)}, {vr(VF+4*s,4)}, {"0" if s == 0 else vr(UA,4)}')
    a(f's_lshl_b32 s11, {sKQ}, 1'); a(f's_add_u32 s11, s11, {sMAT}'); a('s_mul_i32 s11, s11, 3072'); a(f's_lshl_b32 s12, {sCK}, 6'); a('s_add_u32 s11, s11, s12')
    a(f's_lshl_b32 s12, {sW}, 4'); a('s_add_u32 s11, s11, s12'); a('s_lshl_b32 s11, s11, 2'); a(f's_add_u32 s11, s11, {UT_OFF}')
    a('s_cmp_lt_u32 s9, 192'); a('s_cselect_b32 s11, s11, 0x40000000')
    a('v_lshrrev_b32 v7, 3, v2'); a('v_mul_u32_u24 v7, 6144, v7'); a('v_lshl_add_u32 v7, v3, 4, v7')
    set_exec(a, 0x0101010101010101)
    a.vmem(f'buffer_store_dwordx4 {vr(UA,4)}, v7, {WS}, s11 offen sc1')
    set_exec(a, (1 << 64)-1)

def phase2_setup(a, o):
    a(f'v_lshlrev_b32 v8, 4, {vL}')
    a(f's_lshl_b32 s11, {sRB}, 2'); a(f's_add_u32 s11, s11, {sW}'); a(f's_lshl_b32 s13, {sSG}, 3'); a('s_add_u32 s87, s13, s11')
    a(f'v_and_b32 v2, 15, {vL}'); a(f'v_lshrrev_b32 v3, 4, {vL}')
    a('v_and_b32 v5, 1, v3'); a('v_lshlrev_b32 v5, 1, v5'); a('v_lshrrev_b32 v6, 1, v3'); a('v_add_u32 v5, v5, v6')
    a('v_lshlrev_b32 v5, 8, v5'); a('v_lshl_add_u32 v25, v2, 4, v5')
    a(f's_mul_i32 s77, s87, {TILE_B}'); a(f's_mul_i32 s13, {sCB}, 2560'); a('s_add_u32 s77, s77, s13'); a(f's_add_u32 s77, s77, {Y_OFF}')
    a(f's_lshl_b32 s76, {sSG}, 1'); a(f's_add_u32 s76, s76, {sRB}'); a('s_lshl_b32 s76, s76, 3'); a(f's_add_u32 s76, s76, {sCB}'); a('s_lshl_b32 s76, s76, 6')
    a(f's_lshl_b32 s12, {sW}, 4'); a('s_add_u32 s76, s76, s12'); a('s_lshl_b32 s76, s76, 3'); a(f's_add_u32 s76, s76, {STAT_OFF}')
    a(f'v_lshlrev_b32 v26, 3, {vL}')
    a(f'v_lshrrev_b32 v5, 2, {vL}'); a('v_lshlrev_b32 v5, 4, v5'); a(f'v_add_u32 v5, {sM}, v5'); a(f'v_and_b32 v6, 3, {vL}'); a('v_lshl_add_u32 v5, v5, 2, v6')
    a('v_lshlrev_b32 v5, 7, v5'); a(f'v_add_u32 v23, {FLAG_OFF}, v5')
    a(f's_mul_i32 s12, {sM}, 3'); a('s_lshr_b32 s12, s12, 1')
    a(f'v_lshrrev_b32 v5, 2, {vL}')
    a('v_and_b32 v6, 1, v5'); a('v_add_u32 v6, s12, v6'); a('v_min_u32 v6, 23, v6')
    a('v_bfe_u32 v7, v5, 1, 2'); a('v_mul_u32_u24 v7, 24, v7'); a('v_add_u32 v6, v6, v7')
    a('v_lshrrev_b32 v7, 3, v5'); a('v_mul_u32_u24 v7, 96, v7'); a('v_add_u32 v6, v6, v7')
    a(f'v_and_b32 v7, 3, {vL}'); a('v_lshl_add_u32 v6, v6, 2, v7'); a('v_lshlrev_b32 v6, 7, v6'); a(f'v_add_u32 v24, {FLAG_OFF}, v6')
    a(f's_lshl_b32 s90, {sW}, 10')
    a(f's_mul_i32 s88, {sM}, 245760'); a(f's_add_u32 s88, s88, {WGU_OFF}'); a('s_add_u32 s88, s88, s90')
    a(f's_mul_i32 s89, {sCB}, 245760'); a(f's_add_u32 s89, s89, {WD_OFF}'); a('s_add_u32 s89, s89, s90')
    a('s_lshr_b32 s12, s11, 1'); a(f's_lshl_b32 s13, {sSG}, 6'); a('s_add_u32 s12, s12, s13')
    a(f'v_lshl_add_u32 v5, {vL}, 2, s12'); a('v_lshlrev_b32 v5, 7, v5'); a(f'v_add_u32 v29, {FLAG_OFF}, v5')
    a(f's_mul_i32 s12, s87, {TILE_B}'); a(f's_add_u32 s12, s12, {O_OFF}')
    a(f'v_add_u32 v9, 61440, v8')
    a('s_mov_b32 s55, s12')

def phase2(a, o):
    a.comment('================ phase 2')
    a.label('L_p2')
    GA = 32; G2 = 96; XF = 168; ACC = 64; WB = 128
    cpf(a, 'L_p2', 2048)
    a('s_barrier')
    ut_staging(a)
    a('s_waitcnt vmcnt(5)')
    flag_store(a, 4)
    stamp(a, 12)
    def waddr(nt, s):
        off = nt*20480+s*1024
        return ('v8', off) if off < 61440 else ('v9', off-61440)
    wt = {}
    seq = [(s, nt) for s in range(20) for nt in range(5)]
    def rd(idx):
        s, nt = seq[idx]; v, off = waddr(nt, s)
        wt[idx] = a.lds(f'ds_read_b128 {vr(WB+4*(idx%10),4)}, {v} offset:{off}')
    phase2_vectors(a, o)
    a.wait_all_vm()
    a('s_barrier')
    a(f'v_lshrrev_b32 v3, 4, {vL}'); a('v_lshlrev_b32 v4, 4, v3'); a(f'v_add_u32 v4, {L_VEC}, v4')
    for nt in range(5):
        a.lds(f'ds_read_b128 {vr(GA+4*nt,4)}, v4 offset:{64*nt}')
        a.lds(f'ds_read_b128 {vr(G2+4*nt,4)}, v4 offset:{320+64*nt}')
    ut_job(a)
    for idx in range(9): rd(idx)
    a('s_mov_b32 s11, 0xffff0000')
    for i in range(10):
        a(f'v_accvgpr_read_b32 v1, {ar(XA_+i)}')
        a(f'v_lshlrev_b32 {vr(XF+2*i)}, 16, v1'); a(f'v_and_b32 {vr(XF+2*i+1)}, s11, v1')
    poll_flags(a, 'v29', 16, 3, 'v6')
    stamp(a, 13)
    a('s_mov_b32 s12, s55')
    ot = {}
    def oload(s):
        ot[s] = a.vmem(f'buffer_load_dwordx4 {ar(OF+4*s,4)}, v8, {WS}, s12 offen offset:{1024*(s%4)} sc1')
        if s % 4 == 3 and s < 19: a('s_add_u32 s12, s12, 4096')
    for s in range(12): oload(s)
    tf1 = flags_issue(a, 'v23', 'v21')
    from gen_p3 import Dma, gu_group
    dg = Dma(a, 's88')
    early = [lambda g=g: gu_group(dg, 0, g) for g in range(13)]
    for idx, (s, nt) in enumerate(seq):
        if nt == 0: a.wait_vm(ot[s])
        a.wait_lg(wt[idx])
        a(f'v_mfma_f32_16x16x32_bf16 {vr(ACC+4*nt,4)}, {vr(WB+4*(idx%10),4)}, {ar(OF+4*s,4)}, {"0" if s == 0 else vr(ACC+4*nt,4)}')
        if idx+9 < len(seq): rd(idx+9)
        if nt == 1 and s+12 < 20: oload(s+12)
        if idx == 45: flag_store(a, 5)
        if idx == 30:
            flags_check(a, tf1, 'v23', 'v21', 4)
            a('s_barrier')
        if idx >= 32 and idx % 5 == 3 and early: early.pop(0)()
        if idx == 62:
            nsh = 4 if getattr(o, 'map2d', 1) else 2
            a(f's_and_b32 s11, {sSG}, {nsh-1}'); a(f's_mul_i32 s11, s11, {102400//nsh}'); a(f's_lshl_b32 s13, {sW}, 13'); a('s_add_u32 s11, s11, s13')
            a('s_sub_u32 s13, s88, s90'); a('s_add_u32 s11, s11, s13'); a(f's_add_u32 s11, s11, {26*2048}')
            a(f'v_lshlrev_b32 v27, 7, {vL}')
        if idx == 64 or (idx == 74 and not getattr(o, 'map2d', 1)):
            a.vmem(f'buffer_load_dword v254, v27, {WS}, s11 offen sc1', optional=True)
            a('s_add_u32 s11, s11, 32768')
    assert not early
    stamp(a, 14)
    a('s_barrier')
    if getattr(o, 'fine', 0) == 4: stamp(a, 36)
    pieces = [lambda g=g: gu_group(dg, 0, g) for g in range(13, 20)]
    pieces += [lambda g=g: gu_group(dg, 1, g) for g in range(18)]
    PK = 148; YP = 128
    ops = []
    ops += [pkb('fma', XF+2*i, GA+2*i, ACC+2*i, XF+2*i) for i in range(10)]
    ops += [f'v_cvt_pk_bf16_f32 {vr(PK+i)}, {vr(XF+2*i)}, {vr(XF+2*i+1)}' for i in range(10)]
    ops += ['s_mov_b32 s11, 0xffff0000']
    for i in range(10): ops += [f'v_lshlrev_b32 {vr(XF+2*i)}, 16, {vr(PK+i)}', f'v_and_b32 {vr(XF+2*i+1)}, s11, {vr(PK+i)}']
    ops += [pkb('mul', G2+2*i, G2+2*i, XF+2*i) for i in range(10)]
    ops += [f'v_cvt_pk_bf16_f32 {vr(YP+i)}, {vr(G2+2*i)}, {vr(G2+2*i+1)}' for i in range(10)]
    ops += [f'v_mov_b32 {vr(YP+10)}, {vr(YP+8)}', f'v_mov_b32 {vr(YP+11)}, {vr(YP+9)}']
    for p in range(3):
        for d in (0, 1): ops.append(f'v_permlane16_swap_b32 {vr(YP+4*p+d)}, {vr(YP+4*p+2+d)}')
    pi = 0
    for k, op in enumerate(ops):
        a(op)
        if k % 14 == 5 and pi < 5: pieces[pi](); pi += 1
    if getattr(o, 'fine', 0) == 4: stamp(a, 37)
    a.vmem(f'buffer_store_dwordx4 {vr(YP,4)}, v25, {WS}, s77 offen sc1')
    a.vmem(f'buffer_store_dwordx4 {vr(YP+4,4)}, v25, {WS}, s77 offen offset:1024 sc1')
    set_exec(a, 0x0000ffff0000ffff)
    a.vmem(f'buffer_store_dwordx4 {vr(YP+8,4)}, v25, {WS}, s77 offen offset:2048 sc1')
    set_exec(a, (1 << 64)-1)
    while pi < 7: pieces[pi](); pi += 1
    a(pkb('add', 12, XF, XF+2)); a(pkb('mul', 14, XF, XF)); a(pkb('fma', 14, XF+2, XF+2, 14))
    for i in range(2, 10):
        a(pkb('add', 12, 12, XF+2*i)); a(pkb('fma', 14, XF+2*i, XF+2*i, 14))
    a('v_add_f32 v12, v12, v13'); a('v_add_f32 v13, v14, v15')
    for sw in ('v_permlane16_swap_b32', 'v_permlane32_swap_b32'):
        a('v_mov_b32 v14, v12'); a('v_mov_b32 v15, v12'); a('v_mov_b32 v28, v13'); a('v_mov_b32 v29, v13')
        a(f'{sw} v14, v15'); a(f'{sw} v28, v29')
        a('v_add_f32 v12, v14, v15'); a('v_add_f32 v13, v28, v29')
    set_exec(a, 0xffff)
    tl = a.vmem(f'buffer_store_dwordx2 v[12:13], v26, {WS}, s76 offen sc1')
    set_exec(a, (1 << 64)-1)
    for i in range(10): a(f'v_accvgpr_write_b32 {ar(X1A+i)}, {vr(PK+i)}')
    if getattr(o, 'fine', 0) == 4: stamp(a, 38)
    while pi < 13: pieces[pi](); pi += 1
    a.rest_pieces = pieces[pi:]
    stamp(a, 15)
    return tl
```

```python
from layout import *
import gen as G
from gen import flags_issue, flags_check, pkb, cpf, vr, ar, stamp, set_exec, flag_store, poll_flags, WS, SA, SB, SC_, sW, sSG, sM, sN, sFL, vL, f2u, srd, newlab

GU = {}; WD = {}
def _plan():
    for g in range(13): GU[(0, g)] = 25+g
    for g in range(13, 20): GU[(0, g)] = g-13
    for g in range(18): GU[(1, g)] = 7+g
    free = [GU[(0, g)] for g in range(20)]
    for k in [(1, 18), (1, 19)]+[(2, g) for g in range(18)]: GU[k] = free.pop(0)
    free += [GU[(1, g)] for g in range(12)]
    for k in [(2, 18), (2, 19)]: GU[k] = free.pop(0)
    for g in range(10): WD[g] = free.pop(0)
    free += [GU[(1, g)] for g in range(12, 20)]
    for g in range(10, 18): WD[g] = free.pop(0)
    free += [GU[(2, g)] for g in range(10)]
    for g in range(18, 28): WD[g] = free.pop(0)
    free += [GU[(2, g)] for g in range(10, 20)]
    for g in range(28, 38): WD[g] = free.pop(0)
    free += [WD[g] for g in range(10)]
    for g in range(38, 48): WD[g] = free.pop(0)
    free += [WD[g] for g in range(10, 22)]
    for g in range(48, 60): WD[g] = free.pop(0)
    assert not free
_plan()
def gu_addr(p, s, m): return 4096*GU[(p, s >> 1)]+2048*(s & 1)+1024*m
def wd_addr(s, nt):
    q = 5*s+nt
    return 4096*WD[q >> 2]+1024*(q & 3)
def gu_group(dg, p, g): return dg.piece(4096*GU[(p, g)], 81920*p+4096*g)
def wd_group(dd, g): return dd.piece(4096*WD[g], 4096*g)

vT16 = 'v8'
class Dma:
    def __init__(self, a, sbase): self.a = a; self.sbase = sbase
    def piece(self, lds_addr, src_off):
        a = self.a
        a(f's_add_u32 m0, s90, {lds_addr}')
        a(f's_add_u32 s91, {self.sbase}, {src_off}')
        return a.vmem(f'buffer_load_dwordx4 {vT16}, {WS}, s91 offen sc1 lds')

K2 = -2.0*0.7978845608028654*1.4426950408889634
ACC = 32
WB = 96
UTV = 128
TM = 160
PKR = 168
vR, vM = 10, 11
vK2, vC2, vONE = 20, 21, 22

def epi_ops(p):
    A = ACC+32*(p & 1)
    ops = []
    def reads(q):
        b = UTV+16*(q & 1)
        return [('ds', (f'ds_read_b128 {vr(b+4*k,4)}, v18 offset:{384*k+128*p+32*q}', ('ut', p, q))) for k in range(4)]
    ops += reads(0)
    for q in range(4):
        b = UTV+16*(q & 1)
        if q < 3: ops += reads(q+1)
        ops.append(('w', ('ut', p, q)))
        for r in range(4):
            ops.append(('v', f'v_fma_f32 {vr(b+4+r)}, v{vM}, {vr(b+r)}, {vr(b+4+r)}'))
            ops.append(('v', f'v_fma_f32 {vr(b+12+r)}, v{vM}, {vr(b+8+r)}, {vr(b+12+r)}'))
        for r in range(4):
            ops.append(('v', f'v_fma_f32 {vr(A+4*q+r)}, v{vR}, {vr(A+4*q+r)}, {vr(b+4+r)}'))
        for r in range(4): ops.append(('v', f'v_mul_f32 {vr(TM+r)}, {vr(A+4*q+r)}, {vr(A+4*q+r)}'))
        for r in range(4): ops.append(('v', f'v_fma_f32 {vr(A+16+4*q+r)}, v{vR}, {vr(A+16+4*q+r)}, {vr(b+12+r)}'))
        for r in range(4): ops.append(('v', f'v_fmamk_f32 {vr(TM+r)}, {vr(TM+r)}, {hex(f2u(K2*0.044715))}, v{vK2}'))
        for r in range(4): ops.append(('v', f'v_mul_f32 {vr(TM+r)}, {vr(TM+r)}, {vr(A+4*q+r)}'))
        for r in range(4): ops.append(('t', f'v_exp_f32 {vr(TM+r)}, {vr(TM+r)}'))
        for r in range(4): ops.append(('v', f'v_mul_f32 {vr(A+4*q+r)}, {vr(A+4*q+r)}, {vr(A+16+4*q+r)}'))
        for r in range(4): ops.append(('v', f'v_add_f32 {vr(TM+r)}, 1.0, {vr(TM+r)}'))
        for r in range(4): ops.append(('t', f'v_rcp_f32 {vr(TM+r)}, {vr(TM+r)}'))
        for r in range(4): ops.append(('v', f'v_mul_f32 {vr(A+4*q+r)}, {vr(A+4*q+r)}, {vr(TM+r)}'))
        ops.append(('v', f'v_cvt_pk_bf16_f32 {vr(PKR+2*q)}, {vr(A+4*q)}, {vr(A+4*q+1)}'))
        ops.append(('v', f'v_cvt_pk_bf16_f32 {vr(PKR+2*q+1)}, {vr(A+4*q+2)}, {vr(A+4*q+3)}'))
        if q & 1:
            b2 = PKR+2*(q-1)
            ops.append(('t', f'v_permlane32_swap_b32 {vr(b2)}, {vr(b2+2)}')); ops.append(('t', f'v_permlane32_swap_b32 {vr(b2+1)}, {vr(b2+3)}'))
            ops.append(('st', q-1))
    return ops

def epi_packed(a, p, vmq):
    A = ACC+32*(p & 1)
    tk = {}
    def reads(q):
        b = UTV+16*(q & 1)
        for k in range(4): tk[q] = a.lds(f'ds_read_b128 {vr(b+4*k,4)}, v18 offset:{384*k+128*p+32*q}')
    reads(0)
    last = None
    for q in range(4):
        b = UTV+16*(q & 1)
        if q < 3: reads(q+1)
        a.wait_lg(tk[q])
        g = A+4*q; u = A+16+4*q; t = TM
        for h in (0, 2):
            a(pkb('fma', b+4+h, ('b', vM), b+h, b+4+h)); a(pkb('fma', b+12+h, ('b', vM), b+8+h, b+12+h))
        for h in (0, 2): a(pkb('fma', g+h, ('b', vR), g+h, b+4+h))
        for h in (0, 2): a(pkb('mul', t+h, g+h, g+h))
        for h in (0, 2): a(pkb('fma', u+h, ('b', vR), u+h, b+12+h))
        for h in (0, 2): a(pkb('fma', t+h, t+h, ('b', vC2), ('b', vK2)))
        for h in (0, 2): a(pkb('mul', t+h, t+h, g+h))
        for r in range(4): a(f'v_exp_f32 {vr(t+r)}, {vr(t+r)}')
        for h in (0, 2): a(pkb('mul', g+h, g+h, u+h))
        for h in (0, 2): a(pkb('add', t+h, t+h, ('b', vONE)))
        for r in range(4): a(f'v_rcp_f32 {vr(t+r)}, {vr(t+r)}')
        for h in (0, 2): a(pkb('mul', g+h, g+h, t+h))
        a(f'v_cvt_pk_bf16_f32 {vr(PKR+2*q)}, {vr(g)}, {vr(g+1)}'); a(f'v_cvt_pk_bf16_f32 {vr(PKR+2*q+1)}, {vr(g+2)}, {vr(g+3)}')
        if q < 3:
            for f in vmq[3*q:3*q+3]: f()
        if q & 1:
            b2 = PKR+2*(q-1)
            a(f'v_permlane32_swap_b32 {vr(b2)}, {vr(b2+2)}'); a(f'v_permlane32_swap_b32 {vr(b2+1)}, {vr(b2+3)}')
            last = a.vmem(f'buffer_store_dwordx4 {vr(b2,4)}, v19, {WS}, s86 offen offset:{1024*p+256*(q-1)} sc1')
    return last

class P4: pass
st4 = P4()

def act_flag_addr(a, vdst):
    a(f's_lshr_b32 s11, {sM}, 3'); a('s_lshl_b32 s11, s11, 2'); a(f's_add_u32 s11, s11, {sW}'); a('s_lshr_b32 s11, s11, 1')
    a(f's_lshl_b32 s12, {sSG}, 6'); a('s_add_u32 s11, s11, s12')
    a(f'v_and_b32 {vdst}, 15, {vL}'); a(f'v_lshl_add_u32 {vdst}, {vdst}, 2, s11'); a(f'v_lshlrev_b32 {vdst}, 7, {vdst}'); a(f'v_add_u32 {vdst}, {FLAG_OFF}, {vdst}')

def phase3(a, o, tl):
    a.comment('================ phase 3')
    a.label('L_p3')
    dg = Dma(a, 's88'); dd = Dma(a, 's89')
    a(f's_lshr_b32 s11, {sW}, 1'); a('s_lshl_b32 s11, s11, 5'); a(f's_lshl_b32 s12, {sW}, 1'); a('s_and_b32 s12, s12, 3'); a('s_add_u32 s11, s11, s12')
    a(f's_lshl_b32 s12, {sSG}, 6'); a('s_add_u32 s11, s11, s12')
    a(f'v_lshrrev_b32 v5, 1, {vL}'); a('v_lshlrev_b32 v5, 2, v5'); a(f'v_and_b32 v6, 1, {vL}'); a('v_add_u32 v5, v5, v6'); a('v_add_u32 v5, s11, v5')
    a('v_lshlrev_b32 v5, 7, v5'); a(f'v_add_u32 v5, {FLAG_OFF}, v5')
    a(f'v_and_b32 v2, 15, {vL}'); a(f'v_bfe_u32 v3, {vL}, 4, 1'); a(f'v_lshrrev_b32 v4, 5, {vL}')
    a(f'v_mul_u32_u24 v9, {TILE_B}, v3'); a('v_lshl_add_u32 v9, v4, 8, v9'); a('v_lshl_add_u32 v9, v2, 4, v9')
    a(f'v_mul_u32_u24 v19, {ATILE_B}, v3'); a('v_lshl_add_u32 v19, v4, 8, v19'); a('v_lshl_add_u32 v19, v2, 4, v19')
    a(f'v_lshlrev_b32 v18, 4, v4'); a(f'v_add_u32 v18, {L_UT}, v18')
    a(f'v_and_b32 v27, 31, {vL}'); a('v_lshlrev_b32 v27, 3, v27'); a('v_lshl_add_u32 v27, v4, 11, v27')
    a(f's_lshl_b32 s11, {sSG}, 3'); a(f's_lshl_b32 s12, {sW}, 1'); a('s_add_u32 s85, s11, s12')
    a(f's_mul_i32 s86, s85, {ATILE_B}'); a(f's_mul_i32 s12, {sM}, 3072'); a('s_add_u32 s86, s86, s12'); a(f's_add_u32 s86, s86, {ACT_OFF}')
    a(f's_mul_i32 s85, s85, {TILE_B}'); a(f's_add_u32 s85, s85, {Y_OFF}')
    a(f's_lshl_b32 s84, {sSG}, 1'); a(f's_lshr_b32 s12, {sW}, 1'); a('s_add_u32 s84, s84, s12'); a('s_lshl_b32 s84, s84, 12')
    a(f's_and_b32 s12, {sW}, 1'); a('s_lshl_b32 s12, s12, 8'); a('s_add_u32 s84, s84, s12'); a(f's_add_u32 s84, s84, {STAT_OFF}')
    a(f'v_add_u32 v16, 65536, {vT16}'); a(f'v_add_u32 v17, 131072, {vT16}')
    a(f'v_mov_b32 v{vK2}, {hex(f2u(K2))}'); a(f'v_mov_b32 v{vC2}, {hex(f2u(K2*0.044715))}'); a(f'v_mov_b32 v{vONE}, 1.0')
    a(f's_mul_i32 s11, {sW}, 1536'); a(f's_mul_i32 s12, {sM}, 96'); a('s_add_u32 s11, s11, s12'); a('s_lshl_b32 s11, s11, 2'); a(f's_add_u32 s83, s11, {UT_OFF}')
    a(f'v_lshlrev_b32 v28, 3, {vL}')
    a.wait_vm(tl)
    flag_store(a, 6)
    stamp(a, 16)
    cpf(a, 'L_p3', 4096)
    t0 = None
    for f in a.rest_pieces: t0 = f()
    tB = t0; partB = []
    seq = [(p, s, m) for p in range(3) for s in range(40) for m in range(2)]
    wt = {}
    def laddr(byte):
        b = byte//65536
        return [vT16, 'v16', 'v17'][b], byte-65536*b
    def rd(idx):
        p, s, m = seq[idx]
        v, off = laddr(gu_addr(p, s, m))
        wt[idx] = a.lds(f'ds_read_b128 {vr(WB+4*(idx%8),4)}, {v} offset:{off}')
    LA = 6
    a('s_barrier')
    for idx in range(LA): rd(idx)
    poll_flags(a, 'v5', 16, 6, 'v6')
    stamp(a, 17)
    yt = {}
    def yload(s):
        yt[s] = a.vmem(f'buffer_load_dwordx4 {ar(4*s,4)}, v9, {WS}, s85 offen offset:{512*(s%8)} sc1')
        if s % 8 == 7 and s < 39: a('s_add_u32 s85, s85, 4096')
    for s in range(14): yload(s)
    box = {}
    def ut_loads():
        flags_check(a, box['tu'], 'v24', 'v23', 5)
        set_exec(a, (1 << 48)-1)
        for kq in range(4):
            box['ut'] = a.vmem(f'buffer_load_dwordx2 {vr(168+2*kq,2)}, v28, {WS}, s83 offen sc1')
            if kq < 3: a(f's_add_u32 s83, s83, {6144*4}')
        set_exec(a, (1 << 64)-1)
    def ut_sums():
        a.wait_vm(box['ut'])
        set_exec(a, (1 << 48)-1)
        for d in (0, 1):
            a(f'v_add_f32 {vr(168+d)}, {vr(168+d)}, {vr(170+d)}'); a(f'v_add_f32 {vr(172+d)}, {vr(172+d)}, {vr(174+d)}'); a(f'v_add_f32 {vr(168+d)}, {vr(168+d)}, {vr(172+d)}')
        a(f's_mul_i32 s11, {sW}, 384'); a(f's_add_u32 s11, s11, {L_UT}'); a('v_add_u32 v28, s11, v28')
        a.lds('ds_write_b64 v28, v[168:169]')
        set_exec(a, (1 << 64)-1)
    def late_setup():
        for q in range(4): box['tst'] = a.vmem(f'buffer_load_dwordx2 {vr(12+2*q if q < 2 else 24+2*(q-2),2)}, v27, {WS}, s84 offen offset:{512*q} sc1')
        for hh, vd in ((0, 'v29'), (1, 'v30')):
            a(f'v_lshrrev_b32 v5, 2, {vL}'); a('v_lshlrev_b32 v5, 4, v5'); a(f's_and_b32 s11, {sM}, 7'); a(f's_add_u32 s11, s11, {8*hh}'); a('v_add_u32 v5, s11, v5')
            a(f'v_and_b32 v6, 3, {vL}'); a('v_lshl_add_u32 v5, v5, 2, v6'); a('v_lshlrev_b32 v5, 7, v5'); a(f'v_add_u32 {vd}, {FLAG_OFF}, v5')
        box['tw1'] = flags_issue(a, 'v29', 'v5'); box['tw2'] = flags_issue(a, 'v30', 'v6')
        act_flag_addr(a, 'v31')
        a(f's_lshr_b32 s11, {sM}, 3'); a('s_lshl_b32 s11, s11, 2'); a(f's_add_u32 s11, s11, {sW}'); a(f's_lshl_b32 s12, {sSG}, 3'); a('s_add_u32 s87, s11, s12')
        a(f's_mul_i32 s82, s87, {ATILE_B}'); a(f's_add_u32 s82, s82, {ACT_OFF}')
    stamp(a, 18)
    tok = {}
    lk = {}
    at = {}
    st4.at = at
    def act_load(i):
        pp, mm = divmod(i, 16)
        a(f's_add_u32 s91, s82, {3072*mm+1024*pp}')
        at[i] = a.vmem(f'buffer_load_dwordx4 {ar(4*i,4)}, {vT16}, {WS}, s91 offen sc1')
    st4.act_load = act_load
    cost = {'v': 1, 't': 2, 'ds': 1, 'st': 1, 'w': 0, 'f': 0}
    def tag(key, f):
        def g(): tok[key] = f()
        return g
    for p in range(3):
        fill = []
        vq = []
        if p > 0:
            a('s_barrier')
            if p == 1:
                def stats():
                    a.wait_vm(box['tst'])
                    a(pkb('add', 12, 12, 14)); a(pkb('add', 24, 24, 26)); a(pkb('add', 12, 12, 24))
                    for v in ('v12', 'v13'):
                        a(f'v_mov_b32 v14, {v}'); a(f'v_mov_b32 v15, {v}'); a('v_permlane32_swap_b32 v14, v15'); a(f'v_add_f32 {v}, v14, v15')
                    a(f'v_mul_f32 v12, {hex(f2u(1.0/640))}, v12'); a(f'v_mul_f32 v13, {hex(f2u(1.0/640))}, v13')
                    a('v_fma_f32 v13, -v12, v12, v13'); a('v_max_f32 v13, 0, v13'); a(f'v_add_f32 v13, {hex(f2u(1e-5))}, v13')
                    a(f'v_rsq_f32 v{vR}, v13'); a(f'v_mul_f32 v{vM}, v{vR}, v12'); a(f'v_sub_f32 v{vM}, 0, v{vM}')
                fill.append(('f', stats))
                vq += [(0, tag('p1', lambda g=g: gu_group(dg, 1, g))) for g in (18, 19)]
                vq += [(0, tag('p2', lambda g=g: gu_group(dg, 2, g))) for g in range(18)]
                vq += [(48, tag('p2b', lambda g=g: gu_group(dg, 2, g))) for g in (18, 19)]
                vq += [(48, tag('d0', lambda g=g: wd_group(dd, g))) for g in range(10)]
            else:
                vq += [(0, tag('d1', lambda g=g: wd_group(dd, g))) for g in range(10, 18)]
                vq += [(40, tag('d2', lambda g=g: wd_group(dd, g))) for g in range(18, 28)]
                vq += [(62, lambda i=i: act_load(i)) for i in range(7)]
            fill += epi_ops(p-1)
        total = sum(cost[k] for k, _ in fill); spent = 0
        fi = 0; vi = 0; last_v = -9
        base = 80*p
        for k in range(80):
            idx = base+k
            if getattr(o, 'fine', 0) == 3 and k % 20 == 0: stamp(a, 30+4*p+k//20)
            pp, s, m = seq[idx]
            nidx = idx+LA
            if p == 1 and k == 48:
                a.wait_vm(tok['p1']); flags_check(a, box['tw1'], 'v29', 'v5', 4); flags_check(a, box['tw2'], 'v30', 'v6', 4)
                a('s_barrier')
            if p == 2 and k == 40:
                a.wait_vm(tok['p2b']); a('s_barrier')
            if nidx < len(seq):
                np_, ns, nm = seq[nidx]
                if nm == 0 and ns == 0 and np_ == 1:
                    a.wait_vm(tB); a('s_barrier')
                if nm == 0 and ns == 0 and np_ == 2:
                    a.wait_vm(tok['p2']); a('s_barrier')
            if m == 0:
                if p == 0: a.wait_vm(yt[s])
                a.wait_lg(wt[idx+1])
            A = ACC+32*(p & 1)+16*m
            a(f'v_mfma_f32_32x32x16_bf16 {vr(A,16)}, {vr(WB+4*(idx%8),4)}, {ar(4*s,4)}, {"0" if s == 0 else vr(A,16)}')
            if nidx < len(seq): rd(nidx)
            if p == 0:
                if m == 0 and s+14 < 40: yload(s+14)
                if k == 30: box['tu'] = flags_issue(a, 'v24', 'v23')
                if k == 50: ut_loads()
                if k == 64: late_setup()
                if k == 70: ut_sums()
            if vi < len(vq) and k >= vq[vi][0] and k-last_v >= (2 if (len(vq)-vi)*5 >= (80-k)*2 else 3) and k >= 1:
                vq[vi][1](); vi += 1; last_v = k
            want = total*(k-1)//76 if k >= 2 else 0
            while fi < len(fill) and (spent < want or k == 79):
                kind, pl = fill[fi]; fi += 1; spent += cost[kind]
                if kind in ('v', 't'): a(pl)
                elif kind == 'ds': lk[pl[1]] = a.lds(pl[0])
                elif kind == 'w': a.wait_lg(lk[pl])
                elif kind == 'f': pl()
                elif kind == 'st':
                    tok[('st', p-1)] = a.vmem(f'buffer_store_dwordx4 {vr(PKR+2*pl,4)}, v19, {WS}, s86 offen offset:{1024*(p-1)+256*pl} sc1')
            if p == 1 and k == 20: cpf(a, 'L_p4', -2048)
            if p == 2:
                if k == 14:
                    a.wait_vm(tok[('st', 0)]); flag_store(a, 7)
                if k == 52: tok['f7'] = flags_issue(a, 'v31', 'v5')
                if k == 61: flags_check(a, tok['f7'], 'v31', 'v5', 7)
        assert fi == len(fill) and vi == len(vq), (p, fi, len(fill), vi, len(vq))
    stamp(a, 19)
    a.wait_vm(tok['d1'])
    a('s_barrier')
    rest = [lambda i=i: act_load(i) for i in range(7, 16)]
    a.wait_vm(tok[('st', 1)]); flag_store(a, 8)
    last = epi_packed(a, 2, rest)
    stamp(a, 20)
    tok['f8'] = flags_issue(a, 'v31', 'v5')
    for g in range(28, 38): tok['d3'] = wd_group(dd, g)
    a.wait_vm(last)
    flag_store(a, 9)
    stamp(a, 21)
    st4.tok = tok
```

```python
from layout import *
import gen as G
from gen import flags_issue, flags_check, pkb, vr, ar, stamp, set_exec, flag_store, poll_flags, WS, SA, SB, SC_, sW, sSG, sM, sN, sFL, vL, f2u, srd, newlab
from gen_p3 import wd_addr, wd_group, Dma, vT16, st4
from gen_p2 import X1A

def phase4(a, o):
    a.comment('================ phase 4')
    a.label('L_p4')
    at = st4.at; act_load = st4.act_load
    sCB = 's80'
    dd = Dma(a, 's89')
    ACC = 32; WB = 64
    def laddr(byte):
        b = byte//65536
        return [vT16, 'v16', 'v17'][b], byte-65536*b
    seq = [(s, nt) for s in range(48) for nt in range(5)]
    wt = {}
    def rd(idx):
        s, nt = seq[idx]; v, off = laddr(wd_addr(s, nt))
        wt[idx] = a.lds(f'ds_read_b128 {vr(WB+4*(idx%10),4)}, {v} offset:{off}')
    LA = 9
    tok = st4.tok
    for idx in range(LA): rd(idx)
    a(f'v_lshrrev_b32 v3, 4, {vL}'); a('v_lshlrev_b32 v4, 4, v3'); a(f'v_add_u32 v4, {L_VEC+640}, v4')
    GB = 112; XF = 136; PK = 160
    for nt in range(5): tg = a.lds(f'ds_read_b128 {vr(GB+4*nt,4)}, v4 offset:{64*nt}')
    a('s_mov_b32 s11, 0xffff0000')
    for i in range(10):
        a(f'v_accvgpr_read_b32 v1, {ar(X1A+i)}'); a(f'v_lshlrev_b32 {vr(XF+2*i)}, 16, v1'); a(f'v_and_b32 {vr(XF+2*i+1)}, s11, v1')
    srd(a, 44, G.P_OUT, S*D*2)
    a(f'v_and_b32 v2, 15, {vL}')
    a('v_and_b32 v7, 1, v3'); a('v_lshlrev_b32 v7, 1, v7'); a('v_lshrrev_b32 v6, 1, v3'); a('v_add_u32 v7, v7, v6')
    a('v_lshlrev_b32 v7, 4, v7'); a('v_mul_u32_u24 v6, 1280, v2'); a('v_add_u32 v7, v7, v6')
    a(f's_and_b32 {sCB}, {sM}, 7')
    a(f's_lshl_b32 s81, s87, 4'); a('s_mul_i32 s81, s81, 1280'); a(f's_mul_i32 s12, {sCB}, 160'); a('s_add_u32 s81, s81, s12')
    stamp(a, 22)
    def tag(key, f):
        def g(): tok[key] = f()
        return g
    vq = []
    vq += [(1, lambda i=i: act_load(i)) for i in range(16, 24)]
    vq += [(8, tag('d4', lambda g=g: wd_group(dd, g))) for g in range(38, 41)]
    vq += [(8, lambda i=i: act_load(i)) for i in range(24, 32)]
    vq += [(8, tag('d4', lambda g=g: wd_group(dd, g))) for g in range(41, 48)]
    vq += [(20, lambda i=i: act_load(i)) for i in range(32, 40)]
    vq += [(20, tag('d5', lambda g=g: wd_group(dd, g))) for g in range(48, 54)]
    vq += [(20, lambda i=i: act_load(i)) for i in range(40, 48)]
    vq += [(20, tag('d5', lambda g=g: wd_group(dd, g))) for g in range(54, 60)]
    vi = 0
    for idx, (s, nt) in enumerate(seq):
        if getattr(o, 'fine', 0) == 3 and nt == 0 and s % 4 == 0: stamp(a, 44+s//4)
        if nt == 0 and s == 1: flags_check(a, tok['f8'], 'v31', 'v5', 8)
        if nt == 0 and s == 8:
            a.wait_vm(tok['d2']); a('s_barrier')
        if nt == 0 and s == 14: tok['f9'] = flags_issue(a, 'v31', 'v5')
        if nt == 0 and s == 18:
            a.wait_vm(tok['d3']); a('s_barrier')
        if nt == 0 and s == 20: flags_check(a, tok['f9'], 'v31', 'v5', 9)
        nidx = idx+LA
        if nidx < len(seq):
            ns, nn = seq[nidx]; q = 5*ns+nn
            if q == 4*38:
                a.wait_vm(tok['d4']); a('s_barrier')
            if q == 4*48:
                assert vi >= len(vq)-6
                a.wait_vm(tok['d5']); a('s_barrier')
            if q == 4*54:
                assert vi == len(vq)
                a.wait_vm(tok['d5']); a('s_barrier')
        if nt == 0: a.wait_vm(at[s])
        a.wait_lg(wt[idx])
        a(f'v_mfma_f32_16x16x32_bf16 {vr(ACC+4*nt,4)}, {vr(WB+4*(idx%10),4)}, {ar(4*s,4)}, {"0" if s == 0 else vr(ACC+4*nt,4)}')
        if nidx < len(seq): rd(nidx)
        if vi < len(vq) and s >= vq[vi][0] and (nt == 1 or (nt == 3 and s >= 8)):
            vq[vi][1](); vi += 1
    stamp(a, 23)
    for i in range(10): a(pkb('fma', XF+2*i, GB+2*i, ACC+2*i, XF+2*i))
    for i in range(10): a(f'v_cvt_pk_bf16_f32 {vr(PK+i)}, {vr(XF+2*i)}, {vr(XF+2*i+1)}')
    a(f'v_mov_b32 {vr(PK+10)}, {vr(PK+8)}'); a(f'v_mov_b32 {vr(PK+11)}, {vr(PK+9)}')
    for p in range(3):
        for d in (0, 1): a(f'v_permlane16_swap_b32 {vr(PK+4*p+d)}, {vr(PK+4*p+2+d)}')
    a.vmem(f'buffer_store_dwordx4 {vr(PK,4)}, v7, {SA}, s81 offen')
    a.vmem(f'buffer_store_dwordx4 {vr(PK+4,4)}, v7, {SA}, s81 offen offset:64')
    set_exec(a, 0x0000ffff0000ffff)
    a.vmem(f'buffer_store_dwordx4 {vr(PK+8,4)}, v7, {SA}, s81 offen offset:128')
    set_exec(a, (1 << 64)-1)
    stamp(a, 24)
    Lz = newlab('noz'); L = newlab('zs'); Ld = newlab('zd')
    a(f's_xor_b32 s11, {sW}, 3'); a('s_or_b32 s11, s11, s9'); a('s_cmp_lg_u32 s11, 0'); a(f's_cbranch_scc1 {Lz}')
    a(f'v_lshlrev_b32 v5, 2, {vL}'); a('v_add_u32 v5, 3, v5'); a('v_lshlrev_b32 v5, 7, v5'); a(f'v_add_u32 v5, {FLAG_OFF}, v5')
    a(f's_mov_b32 s73, {o.spin}'); a(f's_add_u32 s72, {sN}, 1')
    a.label(L)
    for q in range(4):
        a(f's_mov_b32 s11, {256*128*q}')
        a(f'buffer_load_dword {vr(12+q)}, v5, {WS}, s11 offen sc1')
    a('s_waitcnt vmcnt(0)')
    for q in range(4): a(f'v_subrev_u32 {vr(12+q)}, s72, {vr(12+q)}')
    a('v_max_u32 v12, v12, v13'); a('v_max3_u32 v12, v12, v14, v15')
    a('v_cmp_lt_u32 vcc, 14, v12')
    a('s_sub_u32 s73, s73, 1'); a('s_cmp_eq_u32 s73, 0'); a(f's_cbranch_scc1 {Ld}'); a(f's_cbranch_vccnz {L}')
    a.label(Ld)
    a(f'v_mov_b32 v1, {sN}'); set_exec(a, 1)
    a.vmem(f'buffer_store_dword v1, off, {WS}, 0 sc1', optional=True)
    set_exec(a, (1 << 64)-1)
    a.label(Lz)
```

```python
S, D, H, DH, F = 2048, 640, 32, 20, 1536
Z_OFF     = 0x0
RFLAG_OFF = 0x1000
QFLAG_OFF = 0x1800
FLAG_OFF  = 0x2000
GRAN_OFF  = 0x40000
UT_OFF    = 0x60000
STAT_OFF  = 0x80000
XH_OFF    = 0x100000
O_OFF     = 0x400000
Y_OFF     = 0x700000
ACT_OFF   = 0xA00000
WO_OFF    = 0x1000000
WGU_OFF   = 0x1100000
WD_OFF    = 0x1500000
WQ_OFF    = 0x1700000
PROF_OFF  = 0x1A00000
WS_USED   = 0x1B00000
TILE_B    = 20480
ATILE_B   = 49152
LCG_A = 0x9E3779B1
LCG_C = 0x7F4A7C15
L_W      = 0
L_STG    = 122880
L_G1     = 153600
L_S1     = 156160
L_SC     = 158720
LDS_TOTAL = 163840
L_UTSTG  = 102400
L_VEC    = 159744
L_VG     = 160768
L_UT     = 161536
RING_SLOTS = 76
L_STGQ   = 143360
L_STGO   = 159232
L_BNC    = 139264
```

```python
from layout import *
import gen as G
from gen import vr, ar, WS, vL, sW, sSG, sM

SEL_LO, SEL_HI = 's98', 's99'
OOB = 0x40000000

def srd_for(a, base, ptr, size):
    a(f's_mov_b32 s{base}, s{ptr}'); a(f's_mov_b32 s{base+1}, s{ptr+1}'); a(f's_mov_b32 s{base+2}, {size}'); a(f's_mov_b32 s{base+3}, 0x20000')

def lane_maps(a, kind, vsrc, vdst, t1, t2, t3):
    if kind == 'wq':
        a(f'v_mul_u32_u24 {t1}, 3277, {vL}'); a(f'v_lshrrev_b32 {t1}, 16, {t1}')
        a(f'v_mul_u32_u24 {t2}, 20, {t1}'); a(f'v_sub_u32 {t2}, {vL}, {t2}')
        a(f'v_mul_u32_u24 {t3}, 1280, {t1}'); a(f'v_lshl_add_u32 {vsrc}, {t2}, 2, {t3}')
        a(f's_mul_i32 s11, {sM}, 80'); a(f'v_add_u32 {vsrc}, s11, {vsrc}')
        a(f'v_lshlrev_b32 {t2}, 1, {t2}')
        b = int(vdst[1:]); vs = vr(b+1)
        a(f'v_cmp_le_u32 vcc, 20, {t2}'); a(f'v_cndmask_b32 v4, 0, 1, vcc')
        a(f'v_mul_u32_u24 v5, 20, v4'); a(f'v_sub_u32 {t2}, {t2}, v5')
        a(f'v_lshlrev_b32 v5, 1, {t1}'); a(f'v_cmp_eq_u32 vcc, 2, {t1}'); a('v_mov_b32 v6, 5'); a('v_cndmask_b32 v5, v5, v6, vcc')
        a('v_add_u32 v5, v5, v4'); a('v_lshlrev_b32 v5, 10, v5'); a(f'v_lshl_add_u32 v5, {t2}, 4, v5')
        a(f'v_subrev_u32 v6, 16, {t2}'); a('v_lshl_add_u32 v6, v4, 2, v6'); a('v_lshlrev_b32 v6, 4, v6')
        a(f'v_lshlrev_b32 v7, 7, {t1}'); a('v_add_u32 v7, 4096, v7')
        a('v_mov_b32 v4, 7168'); a('v_cndmask_b32 v7, v7, v4, vcc'); a('v_add_u32 v6, v6, v7')
        a(f'v_cmp_le_u32 s[74:75], 16, {t2}')
        a(f'v_cndmask_b32 {vdst}, v5, v6, s[74:75]')
        a(f's_mul_i32 s11, {sM}, 153600'); a(f's_add_u32 s11, s11, {WQ_OFF}'); a(f'v_add_u32 {vdst}, s11, {vdst}')
        a('s_and_b64 vcc, vcc, s[74:75]')
        a('v_mov_b32 v4, 128'); a('v_mov_b32 v6, 256'); a(f'v_cndmask_b32 {vs}, v6, v4, vcc')
        nl = 60
    elif kind in ('wg', 'wu'):
        a(f's_mul_i32 s11, {sM}, 192'); a(f'v_lshl_add_u32 {vsrc}, {vL}, 2, s11')
        a(f'v_lshrrev_b32 {t1}, 4, {vL}'); a(f'v_mul_u32_u24 {t1}, 81920, {t1}'); a(f'v_and_b32 {t2}, 15, {vL}'); a(f'v_lshl_add_u32 {vdst}, {t2}, 5, {t1}')
        a(f's_mul_i32 s11, {sM}, 245760'); a(f's_add_u32 s11, s11, {WGU_OFF+(1024 if kind == "wu" else 0)}'); a(f'v_add_u32 {vdst}, s11, {vdst}')
        nl = 48
    else:
        a(f's_and_b32 s12, {sM}, 7'); a('s_mul_i32 s11, s12, 160'); a(f'v_lshl_add_u32 {vsrc}, {vL}, 2, s11')
        a(f'v_lshrrev_b32 {t1}, 3, {vL}'); a(f'v_mul_u32_u24 {t1}, {20480 if kind == "wo" else 1024}, {t1}'); a(f'v_and_b32 {t2}, 7, {vL}'); a(f'v_lshl_add_u32 {vdst}, {t2}, 5, {t1}')
        a(f's_mul_i32 s11, s12, {102400 if kind == "wo" else 245760}'); a(f's_add_u32 s11, s11, {WO_OFF if kind == "wo" else WD_OFF}'); a(f'v_add_u32 {vdst}, s11, {vdst}')
        nl = 40
    a(f'v_mov_b32 {t1}, {hex(OOB)}'); a(f'v_cmp_gt_u32 vcc, {nl}, {vL}')
    a(f'v_cndmask_b32 {vsrc}, {t1}, {vsrc}, vcc'); a(f'v_cndmask_b32 {vdst}, {t1}, {vdst}, vcc')

PITCH = {'wq': 3840, 'wg': 3072, 'wu': 3072, 'wo': 1280, 'wd': 1280}

def unit_loads(a, srd, skc, pitch, vsrc, dst, areg=False, stmp='s12', valid=None):
    if isinstance(pitch, int): a(f's_mul_i32 {stmp}, {skc}, {8*pitch}')
    else: a(f's_mul_i32 {stmp}, {skc}, {pitch}'); a(f's_lshl_b32 {stmp}, {stmp}, 3')
    if valid: a(f's_cmp_lg_u32 {valid}, 0'); a(f's_cselect_b32 {stmp}, {stmp}, {hex(OOB)}')
    tk = None
    for e in range(8):
        r = ar(dst+e) if areg else vr(dst+e)
        tk = a.vmem(f'buffer_load_dword {r}, {vsrc}, {srd}, {stmp} offen')
        if e < 7: a(f's_add_u32 {stmp}, {stmp}, {pitch}')
    return tk

def unit_dest_scalar(a, kind, skc, sout, stmp):
    if kind in ('wg', 'wu'):
        a(f's_and_b32 {stmp}, {skc}, 1'); a(f's_lshr_b32 {sout}, {skc}, 1'); a(f's_lshl_b32 {sout}, {sout}, 11'); a(f's_lshl_b32 {stmp}, {stmp}, 9'); a(f's_add_u32 {sout}, {sout}, {stmp}')
    else:
        mul = {'wo': 1024, 'wd': 5120, 'wq': 7680}[kind]
        a(f's_lshr_b32 {sout}, {skc}, 2')
        if kind == 'wd':
            a(f's_mul_i32 {stmp}, {sout}, 21846'); a(f's_lshr_b32 {stmp}, {stmp}, 16')
            a(f's_mul_i32 s72, {stmp}, 3'); a(f's_sub_u32 {sout}, {sout}, s72'); a(f's_lshl_b32 {sout}, {sout}, 4'); a(f's_add_u32 {sout}, {sout}, {stmp}')
        a(f's_mul_i32 {sout}, {sout}, {mul}'); a(f's_and_b32 {stmp}, {skc}, 3')
        if kind != 'wq':
            a(f's_lshl_b32 {stmp}, {stmp}, 8'); a(f's_add_u32 {sout}, {sout}, {stmp}')

def unit_store(a, R, out, vaddr, soff):
    for d in range(4):
        a(f'v_perm_b32 {vr(out+d)}, {vr(R+2*d+1)}, {vr(R+2*d)}, {SEL_LO}')
        a(f'v_perm_b32 {vr(out+4+d)}, {vr(R+2*d+1)}, {vr(R+2*d)}, {SEL_HI}')
    a.vmem(f'buffer_store_dwordx4 {vr(out,4)}, {vaddr}, {WS}, {soff} offen sc1')
    return a.vmem(f'buffer_store_dwordx4 {vr(out+4,4)}, {vaddr}, {WS}, {soff} offen offset:16 sc1')
```

```python
import sys, argparse
if __name__ == '__main__': sys.modules['gen'] = sys.modules['__main__']
from asmcore import Asm, hazard_pass
from layout import *

KNAME = 'adaLN_cond__sliding_local_dilated__geglu_ffn__prompt_kernel'

class Opt:
    stop = 99
    prof = False
    npre = 2
    spin = 200000
o = Opt()

sW, sSG, sM, sXCD, sJ, sN, sROT, sFL = 's3', 's4', 's5', 's6', 's7', 's8', 's9', 's10'
sX = 's9'
P_X, P_WQKV, P_WO, P_BX, P_WG, P_WU, P_WD, P_C, P_WMOD, P_OUT, P_DBG, P_WS = [16+2*i for i in range(12)]
WS = 's[40:43]'; SA = 's[44:47]'; SB = 's[48:51]'; SC_ = 's[52:55]'
vL = 'v0'
vPROF = 'v255'

def srd(a, base, ptr, size):
    a(f's_mov_b32 s{base}, s{ptr}')
    a(f's_mov_b32 s{base+1}, s{ptr+1}')
    a(f's_mov_b32 s{base+2}, {size}')
    a(f's_mov_b32 s{base+3}, 0x20000')

def set_exec(a, mask):
    lo, hi = mask & 0xffffffff, mask >> 32
    if mask == (1 << 64)-1: a('s_mov_b64 exec, -1'); return
    a(f's_mov_b32 exec_lo, {hex(lo)}'); a(f's_mov_b32 exec_hi, {hex(hi)}')

def vr(b, n=1): return f'v{b}' if n == 1 else f'v[{b}:{b+n-1}]'
def ar(b, n=1): return f'a{b}' if n == 1 else f'a[{b}:{b+n-1}]'

_lab = [0]
def newlab(p):
    _lab[0] += 1; return f'L_{p}_{_lab[0]}'

def stamp(a, idx):
    if not o.prof: return
    if getattr(o, 'cyc', 0) == 2:
        a('s_memrealtime s[100:101]'); a('s_memtime s[72:73]')
        a('s_waitcnt lgkmcnt(0)'); a.lg = []
        a(f'v_writelane_b32 {vPROF}, s100, {idx}')
        if idx < 29: a(f'v_writelane_b32 {vPROF}, s72, {idx+32}')
        return
    a('s_memtime s[100:101]' if getattr(o, 'cyc', 0) else 's_memrealtime s[100:101]')
    a('s_waitcnt lgkmcnt(0)'); a.lg = []
    a(f'v_writelane_b32 {vPROF}, s100, {idx}')

def fstamp(a, idx):
    if getattr(o, 'fine', 0) == 2: stamp(a, idx)

def flag_store(a, phase):
    a(f's_add_u32 s72, {sN}, {phase}')
    a('v_mov_b32 v1, s72')
    a('s_mov_b64 exec, 1')
    a.vmem(f'buffer_store_dword v1, off, {WS}, {sFL} sc1', optional=True)
    a('s_mov_b64 exec, -1')

def poll_flags(a, vaddr, nlanes, phase, vtmp):
    L = newlab('poll'); Ld = newlab('polld')
    mask = (1 << nlanes)-1
    set_exec(a, mask)
    a(f's_add_u32 s72, {sN}, {phase}')
    a(f's_mov_b32 s73, {o.spin}')
    a.label(L)
    a(f'buffer_load_dword {vtmp}, {vaddr}, {WS}, 0 offen sc1')
    a('s_waitcnt vmcnt(0)'); a.vm = []
    a(f'v_subrev_u32 {vtmp}, s72, {vtmp}')
    a(f'v_cmp_lt_u32 vcc, {15-phase}, {vtmp}')
    a('s_sub_u32 s73, s73, 1')
    a('s_cmp_eq_u32 s73, 0')
    a(f's_cbranch_scc1 {Ld}')
    a(f's_cbranch_vccnz {L}')
    a.label(Ld)
    a('s_mov_b64 exec, -1')

SLOW = []
def flags_issue(a, vaddr, vdst, nlanes=64):
    return a.vmem(f'buffer_load_dword {vdst}, {vaddr}, {WS}, 0 offen sc1')

def flags_check(a, tok, vaddr, vdst, phase):
    a.wait_vm(tok)
    Ls = newlab('slow'); Lb = newlab('back')
    a(f's_add_u32 s72, {sN}, {phase}')
    a(f'v_subrev_u32 {vdst}, s72, {vdst}')
    a(f'v_cmp_lt_u32 vcc, {15-phase}, {vdst}')
    a(f's_cbranch_vccnz {Ls}')
    a.label(Lb)
    SLOW.append((Ls, Lb, vaddr, vdst, phase))

def emit_slow(a):
    for Ls, Lb, vaddr, vdst, phase in SLOW:
        L = newlab('spin')
        a.label(Ls)
        a(f's_mov_b32 s73, {o.spin}')
        a.label(L)
        a(f'buffer_load_dword {vdst}, {vaddr}, {WS}, 0 offen sc1')
        a('s_waitcnt vmcnt(0)')
        a(f'v_subrev_u32 {vdst}, s72, {vdst}')
        a(f'v_cmp_lt_u32 vcc, {15-phase}, {vdst}')
        a('s_sub_u32 s73, s73, 1'); a('s_cmp_eq_u32 s73, 0'); a(f's_cbranch_scc1 {Lb}')
        a(f's_cbranch_vccnz {L}')
        a(f's_branch {Lb}')

def prologue(a):
    a('s_cmp_ge_u32 s2, 256')
    a('s_cbranch_scc1 L_exit')
    a('s_load_dwordx16 s[16:31], s[0:1], 0')
    a('s_load_dwordx8 s[32:39], s[0:1], 64')
    a('s_getpc_b64 s[14:15]')
    a.label('L_pc')
    a('v_lshlrev_b32 v3, 7, v0')
    a('v_min_u32 v3, (L_code_end-L_pc-4), v3')
    a('global_load_dword v254, v3, s[14:15]')
    a('v_lshrrev_b32 v1, 6, v0')
    a('v_and_b32 v0, 63, v0')
    a(f'v_readfirstlane_b32 {sW}, v1')
    a('v_and_b32 v252, 15, v0'); a('v_lshl_add_u32 v252, v1, 4, v252'); a('v_lshlrev_b32 v252, 7, v252')
    a(f's_and_b32 {sXCD}, s2, 7')
    a(f's_lshr_b32 {sJ}, s2, 3')
    if getattr(o, 'map2d', 1):
        a(f's_lshr_b32 {sSG}, {sXCD}, 1'); a(f's_lshl_b32 {sSG}, {sSG}, 2'); a(f's_lshr_b32 s11, {sJ}, 3'); a(f's_add_u32 {sSG}, {sSG}, s11')
        a(f's_and_b32 {sM}, {sJ}, 3'); a(f's_and_b32 s11, {sXCD}, 1'); a('s_lshl_b32 s11, s11, 2'); a(f's_add_u32 {sM}, {sM}, s11')
        a(f's_and_b32 s11, {sJ}, 4'); a('s_lshl_b32 s11, s11, 1'); a(f's_add_u32 {sM}, {sM}, s11')
    else:
        a(f's_and_b32 {sM}, {sJ}, 15')
        a(f's_lshr_b32 s11, {sJ}, 4')
        a(f's_lshl_b32 {sSG}, {sXCD}, 1')
        a(f's_add_u32 {sSG}, {sSG}, s11')
    a(f's_lshl_b32 {sX}, {sSG}, 4'); a(f's_add_u32 {sX}, {sX}, {sM}')
    a('s_mov_b32 s98, 0x05040100'); a('s_mov_b32 s99, 0x07060302')
    a(f's_lshl_b32 s11, {sSG}, 4')
    a(f's_add_u32 s11, s11, {sM}')
    a('s_lshl_b32 s11, s11, 2')
    a(f's_add_u32 s11, s11, {sW}')
    a('s_lshl_b32 s11, s11, 7')
    a(f's_add_u32 {sFL}, s11, {FLAG_OFF}')
    if o.prof:
        a(f'v_mov_b32 {vPROF}, 0')
    a('s_waitcnt lgkmcnt(0)')
    srd(a, 40, P_WS, WS_USED)
    stamp(a, 0)
    if o.prof and getattr(o, 'cyc', 0) != 2:
        a('s_memtime s[100:101]'); a('s_waitcnt lgkmcnt(0)'); a(f'v_writelane_b32 {vPROF}, s100, 61')
    a(f'buffer_load_dword v251, off, {WS}, 0 sc1')
    t_nonce = 'nonce'
    a(f's_cmp_eq_u32 {sW}, 1'); a('s_cbranch_scc1 L_ld1')
    a(f's_cmp_eq_u32 {sW}, 2'); a('s_cbranch_scc1 L_ld2')
    a(f's_cmp_eq_u32 {sW}, 3'); a('s_cbranch_scc1 L_ld3')
    ld_ln(a); a('s_branch L_role_ln')
    a.label('L_ld1'); ld_wo(a); a('s_branch L_role_wo')
    a.label('L_ld2'); ld_mod(a); a('s_branch L_role_mod')
    a.label('L_ld3'); ld_wq(a); a('s_branch L_role_wq')

TOK = {}
def ld_ln(a):
    a.reset_counts()
    srd(a, 44, P_X, S*D*2)
    a(f's_lshl_b32 s11, {sSG}, 4'); a(f's_add_u32 s11, s11, {sM}'); a(f's_mul_i32 s11, s11, {8*1280}')
    a(f'v_and_b32 v5, 7, {vL}'); a(f'v_lshrrev_b32 v6, 3, {vL}')
    a('v_mul_u32_u24 v7, 1280, v5'); a('v_lshl_add_u32 v7, v6, 4, v7')
    TOK['x'] = [a.vmem(f'buffer_load_dwordx4 {vr(8+4*t,4)}, v7, {SA}, s11 offen offset:{128*t}') for t in range(10)]
    TOK['x_vm'] = list(a.vm)

def ld_wo(a):
    a.reset_counts()
    srd(a, 44, P_WO, D*D*2)
    a(f's_lshr_b32 s84, {sM}, 3')
    a(f's_mul_i32 s85, {sSG}, 3'); a(f's_lshl_b32 s86, {sSG}, 1'); a('s_add_u32 s86, s86, 48')
    a('s_cmp_eq_u32 s84, 0'); a('s_cselect_b32 s85, s85, s86')
    a(f'v_mul_u32_u24 v5, 6554, {vL}'); a('v_lshrrev_b32 v5, 16, v5'); a('v_mul_u32_u24 v6, 10, v5'); a(f'v_sub_u32 v6, {vL}, v6')
    a('v_mul_u32_u24 v5, 1280, v5'); a('v_lshl_add_u32 v5, v6, 4, v5')
    a(f's_mul_i32 s11, s85, {8*1280}'); a(f's_and_b32 s12, {sM}, 7'); a('s_mul_i32 s12, s12, 160'); a('s_add_u32 s11, s11, s12')
    set_exec(a, (1 << 60)-1)
    for q in range(4):
        a(f's_mov_b32 m0, {L_STGO+960*q}')
        TOK['wo'] = a.vmem(f'buffer_load_dwordx4 v5, {SA}, s11 offen lds')
        if q < 3: a(f's_add_u32 s11, s11, {6*1280}')
    set_exec(a, (1 << 64)-1)
    TOK['wo_vm'] = list(a.vm)

def ld_mod(a):
    a.reset_counts()
    a('s_mul_i32 s84, s2, 1093'); a('s_lshr_b32 s84, s84, 16')
    a('s_mul_i32 s85, s84, 60'); a('s_sub_u32 s85, s2, s85')
    srd(a, 44, P_C, D*2)
    srd(a, 48, P_WMOD, D*6*D*2)
    a('s_mul_i32 s13, s84, 320')
    a(f'v_lshlrev_b32 v5, 3, {vL}')
    TOK['c'] = a.vmem(f'buffer_load_dwordx2 v[8:9], v5, {SA}, s13 offen')
    a(f'v_lshrrev_b32 v6, 3, {vL}'); a(f'v_and_b32 v7, 7, {vL}'); a('v_mul_u32_u24 v6, 7680, v6'); a('v_lshl_add_u32 v6, v7, 4, v6')
    a(f's_mul_i32 s13, s84, {160*7680}'); a('s_lshl_b32 s72, s85, 7'); a('s_add_u32 s13, s13, s72')
    a('s_cmp_lt_u32 s2, 240'); a('s_cselect_b32 s13, s13, 0x40000000')
    for t in range(20):
        a(f's_mov_b32 m0, {L_STG+1024*t}')
        TOK['wm'] = a.vmem(f'buffer_load_dwordx4 v6, {SB}, s13 offen lds')
        if t < 19: a(f's_add_u32 s13, s13, {8*7680}')
    TOK['mod_vm'] = list(a.vm)

def ld_wq(a):
    a.reset_counts()
    srd(a, 44, P_WQKV, D*3*D*2)
    a(f'v_mul_u32_u24 v5, 4370, {vL}'); a('v_lshrrev_b32 v5, 16, v5')
    a('v_mul_u32_u24 v6, 15, v5'); a(f'v_sub_u32 v6, {vL}, v6')
    a('v_mul_u32_u24 v7, 13108, v6'); a('v_lshrrev_b32 v7, 16, v7')
    a('v_mul_u32_u24 v5, 3840, v5'); a('v_lshl_add_u32 v5, v6, 4, v5'); a('v_mul_u32_u24 v7, 1200, v7'); a('v_add_u32 v5, v5, v7')
    a(f's_mul_i32 s11, {sSG}, {40*3840}'); a(f's_mul_i32 s12, {sM}, 80'); a('s_add_u32 s11, s11, s12')
    set_exec(a, (1 << 60)-1)
    for q in range(10):
        a(f's_mov_b32 m0, {L_STGQ+960*q}')
        TOK['wq'] = a.vmem(f'buffer_load_dwordx4 v5, {SA}, s11 offen lds')
        if q < 9: a(f's_add_u32 s11, s11, {4*3840}')
    set_exec(a, (1 << 64)-1)
    TOK['wq_vm'] = list(a.vm)

def cpf(a, label, off=0):
    a(f'v_add_u32 v253, ({label}-L_pc+{off}), v252')
    a('v_min_u32 v253, (L_code_end-L_pc-4), v253')
    a.vmem('global_load_dword v254, v253, s[14:15]', optional=True)

def get_nonce(a):
    a('v_readfirstlane_b32 s11, v251')
    a(f's_mul_i32 {sN}, s11, {hex(LCG_A)}')
    a(f's_add_u32 {sN}, {sN}, {hex(LCG_C)}')

def row_reduce16(a, v, t):
    for r in (8, 4, 2, 1):
        a(f'v_add_f32_dpp {v}, {v}, {v} row_ror:{r} row_mask:0xf bank_mask:0xf')

def pk(a, op, d, x, y, z=None):
    a(f'v_pk_{op}_f32 {vr(d,2)}, {vr(x,2)}, {vr(y,2)}' + (f', {vr(z,2)}' if z is not None else ''))

def pkb(op, d, *src):
    ops = []; sel = []; selhi = []
    for x in src:
        if isinstance(x, tuple):
            n = x[1]; ops.append(vr(n & ~1, 2)); sel.append(n & 1); selhi.append(n & 1)
        else:
            ops.append(vr(x, 2)); sel.append(0); selhi.append(1)
    t = f'v_pk_{op}_f32 {vr(d,2)}, ' + ', '.join(ops)
    if any(sel): t += ' op_sel:[' + ','.join(map(str, sel)) + ']'
    if not all(selhi): t += ' op_sel_hi:[' + ','.join(map(str, selhi)) + ']'
    return t

def cross8(a, v, t0, t1):
    a(f'v_add_f32_dpp {v}, {v}, {v} row_ror:8 row_mask:0xf bank_mask:0xf')
    for sw in ('v_permlane16_swap_b32', 'v_permlane32_swap_b32'):
        a(f'v_mov_b32 {t0}, {v}'); a(f'v_mov_b32 {t1}, {v}'); a(f'{sw} {t0}, {t1}'); a(f'v_add_f32 {v}, {t0}, {t1}')

def role_ln(a):
    a.comment('==== role (wave 0): LayerNorm of 8 rows -> xhat (f16, fragment-major)')
    a.label('L_role_ln')
    a.vm = list(TOK['x_vm']); a.lg = []
    toks = TOK['x']
    X = 8; U = 48
    a(f's_and_b32 s12, {sM}, 1'); a('s_lshl_b32 s12, s12, 3'); a('v_add_u32 v5, s12, v5'); a('v_lshlrev_b32 v5, 4, v5'); a('v_lshl_add_u32 v5, v6, 8, v5')
    a(f's_lshr_b32 s12, {sM}, 1'); a(f's_lshl_b32 s13, {sSG}, 3'); a('s_add_u32 s12, s12, s13'); a(f's_mul_i32 s12, s12, {TILE_B}'); a(f's_add_u32 s12, s12, {XH_OFF}')
    a('s_mov_b32 s13, 0xffff0000')
    fstamp(a, 25)
    for t in range(10):
        a.wait_vm(toks[t])
        if t == 0: get_nonce(a); fstamp(a, 26)
        for d in range(4):
            a(f'v_lshlrev_b32 {vr(U+8*t+2*d)}, 16, {vr(X+4*t+d)}')
            a(f'v_and_b32 {vr(U+8*t+2*d+1)}, s13, {vr(X+4*t+d)}')
    A = 128
    for k in range(4): pk(a, 'add', A+2*k, U+2*k, U+8+2*k)
    for e in range(8, 40): pk(a, 'add', A+2*(e % 4), A+2*(e % 4), U+2*e)
    pk(a, 'add', A, A, A+2); pk(a, 'add', A+4, A+4, A+6); pk(a, 'add', A, A, A+4)
    a(f'v_add_f32 v136, {vr(A)}, {vr(A+1)}')
    cross8(a, 'v136', 'v138', 'v139')
    a(f'v_mul_f32 v136, {hex(f2u(-1.0/640))}, v136'); a('v_mov_b32 v137, v136')
    for e in range(40): pk(a, 'add', U+2*e, U+2*e, 136)
    for k in range(4): pk(a, 'mul', A+2*k, U+2*k, U+2*k)
    for e in range(4, 40): pk(a, 'fma', A+2*(e % 4), U+2*e, U+2*e, A+2*(e % 4))
    pk(a, 'add', A, A, A+2); pk(a, 'add', A+4, A+4, A+6); pk(a, 'add', A, A, A+4)
    a(f'v_add_f32 v136, {vr(A)}, {vr(A+1)}')
    cross8(a, 'v136', 'v138', 'v139')
    a(f'v_mov_b32 v137, {hex(f2u(1e-5))}'); a(f'v_fmac_f32 v137, {hex(f2u(1.0/640))}, v136')
    a('v_rsq_f32 v136, v137'); a('v_mov_b32 v137, v136')
    fstamp(a, 27)
    for t in range(10):
        for d in range(4):
            pk(a, 'mul', U+8*t+2*d, U+8*t+2*d, 136)
        for d in range(4):
            a(f'v_cvt_pk_f16_f32 {vr(X+4*t+d)}, {vr(U+8*t+2*d)}, {vr(U+8*t+2*d+1)}')
        a.vmem(f'buffer_store_dwordx4 {vr(X+4*t,4)}, v5, {WS}, s12 offen offset:{2048*(t & 1)} sc1')
        if t & 1 and t < 9: a('s_add_u32 s12, s12, 4096')
    a.wait_all_vm()
    flag_store(a, 1)
    cpf(a, 'L_p1'); cpf(a, 'L_p1', 8192)
    stamp(a, 1)
    a(f's_lshl_b32 s11, {sSG}, 4'); a(f'v_add_u32 v7, s11, {vL}')
    a(f's_cmp_eq_u32 {sSG}, 0'); a('s_cselect_b32 s12, 16, 18')
    a('v_subrev_u32 v8, s12, v7'); a(f'v_cmp_gt_u32 vcc, 16, {vL}'); a('v_cndmask_b32 v7, v8, v7, vcc')
    a('v_lshlrev_b32 v7, 2, v7')
    a(f'v_subrev_u32 v8, 18, {vL}'); a(f'v_lshl_add_u32 v8, v8, 4, {sM}'); a('v_lshl_add_u32 v8, v8, 2, 3')
    a(f'v_cmp_gt_u32 vcc, 18, {vL}'); a('v_cndmask_b32 v7, v8, v7, vcc')
    a('v_lshlrev_b32 v7, 7, v7'); a(f'v_add_u32 v7, {FLAG_OFF}, v7')
    poll_flags(a, 'v7', 34, 1, 'v8')
    stamp(a, 2)
    a(f'v_lshlrev_b32 v8, 4, {vL}')
    a(f's_mul_i32 s83, {sM}, 153600'); a(f's_add_u32 s83, s83, {WQ_OFF}')
    for q in range(60, 120): wq_piece(a, 1024*q, 1024*q)
    stamp(a, 3)
    a('s_branch L_p0_join')

def tr_lane(a, pitch):
    a(f'v_lshrrev_b32 v20, 4, {vL}'); a(f'v_and_b32 v21, 15, {vL}'); a('v_and_b32 v22, 3, v21')
    a('v_lshrrev_b32 v23, 2, v21'); a(f'v_mul_u32_u24 v23, {pitch}, v23')

def role_wo(a):
    a.comment('==== role (wave 1): re-tile up to 3 k-chunks of W_o, then gather sa')
    a.label('L_role_wo')
    a.vm = list(TOK['wo_vm']); a.lg = []
    tr_lane(a, 160)
    a('v_lshlrev_b32 v24, 5, v20'); a('v_lshl_add_u32 v24, v22, 3, v24'); a('v_add_u32 v24, v24, v23'); a(f'v_add_u32 v24, {L_STGO}, v24')
    a('v_lshlrev_b32 v25, 3, v22'); a('v_add_u32 v25, v25, v23'); a(f'v_add_u32 v25, {L_STGO+128}, v25')
    a(f's_and_b32 s12, {sM}, 7'); a('s_mul_i32 s12, s12, 102400'); a(f's_add_u32 s12, s12, {WO_OFF}')
    a('v_mul_u32_u24 v26, 20480, v20'); a('v_lshl_add_u32 v26, v21, 4, v26'); a('v_add_u32 v26, s12, v26')
    a('v_lshlrev_b32 v27, 4, v21'); a(f'v_add_u32 v27, {4*20480}, v27'); a('v_add_u32 v27, s12, v27')
    a('v_mov_b32 v28, 0x40000000'); a(f'v_cmp_gt_u32 vcc, 16, {vL}'); a('v_cndmask_b32 v27, v28, v27, vcc')
    a.wait_vm(TOK['wo']); get_nonce(a)
    tk = []
    for t in range(3):
        for ab, v in ((0, 'v24'), (1, 'v25')):
            a.lds(f'ds_read_b64_tr_b16 {vr(32+8*t+4*ab,2)}, {v} offset:{8*160*t}')
            tk.append(a.lds(f'ds_read_b64_tr_b16 {vr(32+8*t+4*ab+2,2)}, {v} offset:{8*160*t+4*160}'))
    for t in range(3):
        a(f's_add_u32 s86, s85, {t}'); a('s_and_b32 s87, s86, 3'); a('s_lshr_b32 s86, s86, 2'); a('s_lshl_b32 s86, s86, 10'); a('s_lshl_b32 s87, s87, 8'); a('s_add_u32 s86, s86, s87')
        if t == 2: a('s_cmp_eq_u32 s84, 0'); a('s_cselect_b32 s86, s86, 0x40000000')
        a.wait_lg(tk[2*t+1])
        a.vmem(f'buffer_store_dwordx4 {vr(32+8*t,4)}, v26, {WS}, s86 offen sc1')
        a.vmem(f'buffer_store_dwordx4 {vr(32+8*t+4,4)}, v27, {WS}, s86 offen sc1')
    stamp(a, 1)
    gather_gs(a, 0)
    stamp(a, 3)
    a('s_branch L_p0_join')

def f2u(x):
    import struct
    return struct.unpack('<I', struct.pack('<f', x))[0]

def gather_vec(a, colbase_s, nload, V, plus_one, lds_addr_v, label):
    L = newlab('gath'); Ld = newlab('gathd')
    a(f'v_lshlrev_b32 v5, 4, {vL}')
    a(f's_lshl_b32 s11, {colbase_s}, 3')
    a(f's_add_u32 s11, s11, {GRAN_OFF}')
    a(f's_mov_b32 s73, {o.spin}')
    a.label(L)
    a('s_mov_b32 s12, s11')
    for kq in range(4):
        for t in range(nload):
            a(f'buffer_load_dwordx4 {vr(V+(kq*nload+t)*4,4)}, v5, {WS}, s12 offen offset:{1024*t if 1024*t < 4096 else 0} sc1' if t < 4 else
              f'buffer_load_dwordx4 {vr(V+(kq*nload+t)*4,4)}, v5, {WS}, s13 offen sc1')
            if t == 3 and nload > 4: a(f's_add_u32 s13, s12, 4096')
        if kq < 3: a(f's_add_u32 s12, s12, {3840*8}')
    a('s_waitcnt vmcnt(0)'); a.vm = []
    n = 4*nload
    a(f'v_max_u32 v6, {vr(V+1)}, {vr(V+3)}')
    a(f'v_min_u32 v7, {vr(V+1)}, {vr(V+3)}')
    for q in range(1, n):
        a(f'v_max3_u32 v6, v6, {vr(V+4*q+1)}, {vr(V+4*q+3)}')
        a(f'v_min3_u32 v7, v7, {vr(V+4*q+1)}, {vr(V+4*q+3)}')
    a(f'v_cmp_ne_u32 vcc, {sN}, v6')
    a(f'v_cmp_ne_u32 s[74:75], {sN}, v7')
    a('s_or_b64 vcc, vcc, s[74:75]')
    a('s_sub_u32 s73, s73, 1')
    a('s_cmp_eq_u32 s73, 0')
    a(f's_cbranch_scc1 {Ld}')
    a(f's_cbranch_vccnz {L}')
    a.label(Ld)
    fstamp(a, 29)
    for t in range(nload):
        for h in (0, 2):
            b0 = V+4*t+h
            a(f'v_add_f32 {vr(b0)}, {vr(b0)}, {vr(V+4*(nload+t)+h)}')
            a(f'v_add_f32 {vr(V+4*(2*nload+t)+h)}, {vr(V+4*(2*nload+t)+h)}, {vr(V+4*(3*nload+t)+h)}')
            a(f'v_add_f32 {vr(b0)}, {vr(b0)}, {vr(V+4*(2*nload+t)+h)}')
    a('s_mov_b32 s13, 0xffff0000')
    for t in range(nload):
        p = V+4*t
        a(f'v_cvt_pk_bf16_f32 {vr(p+1)}, {vr(p)}, {vr(p+2)}')
        if plus_one:
            a(f'v_lshlrev_b32 {vr(p)}, 16, {vr(p+1)}')
            a(f'v_and_b32 {vr(p+2)}, s13, {vr(p+1)}')
            a(f'v_add_f32 {vr(p)}, 1.0, {vr(p)}')
            a(f'v_add_f32 {vr(p+2)}, 1.0, {vr(p+2)}')
            a(f'v_cvt_pk_bf16_f32 {vr(p+1)}, {vr(p)}, {vr(p+2)}')
        a(f'v_lshlrev_b32 {vr(p+2)}, 16, {vr(p+1)}')
        a(f'v_and_b32 {vr(p+3)}, s13, {vr(p+1)}')

def gather_gs(a, which):
    V = 8
    L = newlab('probe'); Ld = newlab('probed')
    a(f'v_mul_u32_u24 v5, 6554, {vL}'); a('v_lshrrev_b32 v5, 16, v5')
    a('v_mul_u32_u24 v6, 10, v5'); a(f'v_sub_u32 v6, {vL}, v6')
    a('v_mul_u32_u24 v5, 3840, v5'); a('v_lshl_add_u32 v5, v6, 6, v5'); a(f'v_add_u32 v5, {640*which+63}, v5')
    a('v_lshlrev_b32 v5, 3, v5'); a(f'v_add_u32 v5, {GRAN_OFF+4}, v5')
    set_exec(a, (1 << 40)-1)
    a(f's_mov_b32 s73, {o.spin}')
    a.label(L)
    a(f'buffer_load_dword v6, v5, {WS}, 0 offen sc1')
    a('s_waitcnt vmcnt(0)'); a.vm = []
    a(f'v_cmp_ne_u32 vcc, {sN}, v6')
    a('s_sub_u32 s73, s73, 1'); a('s_cmp_eq_u32 s73, 0'); a(f's_cbranch_scc1 {Ld}'); a(f's_cbranch_vccnz {L}')
    a.label(Ld)
    set_exec(a, (1 << 64)-1)
    fstamp(a, 28)
    a(f's_mov_b32 s76, {640*which}')
    gather_vec(a, 's76', 5, V, which == 1, None, None)
    a(f'v_lshlrev_b32 v5, 3, {vL}')
    a(f'v_add_u32 v5, {L_G1 if which else L_S1}, v5')
    for t in range(5):
        a.lds(f'ds_write_b64 v5, {vr(V+4*t+2,2)} offset:{512*t}')
    a.wait_all_lg()

def role_mod(a):
    a.comment('==== role: mod partial (wave 2): silu(c)[160 kq..] @ w_mod[160 rows, 64 cols] via MFMA')
    a.label('L_role_mod')
    a.vm = list(TOK['mod_vm']); a.lg = []
    tc, td = TOK['c'], TOK['wm']
    a('s_mov_b32 s11, s84'); a('s_mov_b32 s12, s85')
    a('s_mul_i32 s13, s11, 3840')
    a('s_lshl_b32 s72, s12, 6')
    a('s_add_u32 s13, s13, s72')
    a('s_lshl_b32 s13, s13, 3')
    a(f's_add_u32 s76, s13, {GRAN_OFF}'); a('s_cmp_lt_u32 s2, 240'); a('s_cselect_b32 s76, s76, 0x40000000')
    a(f'v_lshrrev_b32 v20, 4, {vL}')
    a('v_lshlrev_b32 v21, 5, v20')
    a(f'v_and_b32 v22, 15, {vL}')
    a('v_lshrrev_b32 v23, 2, v22')
    a('v_lshl_add_u32 v23, v20, 3, v23')
    a('v_lshlrev_b32 v23, 7, v23')
    a('v_and_b32 v24, 3, v22')
    a('v_lshl_add_u32 v23, v24, 3, v23')
    a(f'v_add_u32 v23, {L_STG}, v23')
    a('v_lshlrev_b32 v25, 4, v20')
    a(f'v_add_u32 v25, {L_SC}, v25')
    fstamp(a, 25)
    a.wait_vm(tc)
    get_nonce(a)
    fstamp(a, 26)
    a('s_mov_b32 s13, 0xffff0000')
    a('v_lshlrev_b32 v10, 16, v8'); a('v_and_b32 v11, s13, v8')
    a('v_lshlrev_b32 v12, 16, v9'); a('v_and_b32 v13, s13, v9')
    for k in range(4): a(f'v_mul_f32 {vr(14+k)}, {hex(f2u(-1.4426950408889634))}, {vr(10+k)}')
    for k in range(4): a(f'v_exp_f32 {vr(14+k)}, {vr(14+k)}')
    for k in range(4): a(f'v_add_f32 {vr(14+k)}, 1.0, {vr(14+k)}')
    for k in range(4): a(f'v_rcp_f32 {vr(14+k)}, {vr(14+k)}')
    for k in range(4): a(f'v_mul_f32 {vr(10+k)}, {vr(10+k)}, {vr(14+k)}')
    a('v_cvt_pk_bf16_f32 v10, v10, v11'); a('v_cvt_pk_bf16_f32 v11, v12, v13')
    a(f'v_add_u32 v5, {L_SC}, v5')
    a.lds('ds_write_b64 v5, v[10:11]')
    a.wait_all_lg()
    a.wait_vm(td)
    stamp(a, 1)
    ACC = 32; WF = 48; VF = 64
    for s in range(5):
        vf = VF+4*(s & 1)
        tv = a.lds(f'ds_read_b128 {vr(vf,4)}, v25 offset:{64*s}')
        tw = []
        for nt in range(4):
            a.lds(f'ds_read_b64_tr_b16 {vr(WF+4*nt,2)}, v23 offset:{4096*s+32*nt}')
            tw.append(a.lds(f'ds_read_b64_tr_b16 {vr(WF+4*nt+2,2)}, v23 offset:{4096*s+32*nt+512}'))
        for nt in range(4):
            a.wait_lg(tw[nt])
            c = '0' if s == 0 else vr(ACC+4*nt, 4)
            a(f'v_mfma_f32_16x16x32_bf16 {vr(ACC+4*nt,4)}, {vr(WF+4*nt,4)}, {vr(vf,4)}, {c}')
    a('v_cmp_eq_u32 vcc, 1, v22'); a('v_lshl_add_u32 v21, v22, 4, v21')
    set_exec(a, 0x0003000300030003)
    for nt in range(4):
        b = 72+4*nt
        a(f'v_cndmask_b32 {vr(b)}, {vr(ACC+4*nt)}, {vr(ACC+4*nt+2)}, vcc'); a(f'v_mov_b32 {vr(b+1)}, {sN}')
        a(f'v_cndmask_b32 {vr(b+2)}, {vr(ACC+4*nt+1)}, {vr(ACC+4*nt+3)}, vcc'); a(f'v_mov_b32 {vr(b+3)}, {sN}')
        a.vmem(f'buffer_store_dwordx4 {vr(b,4)}, v21, {WS}, s76 offen offset:{128*nt} sc1')
    a('s_mov_b64 exec, -1')
    a.reset_counts()
    stamp(a, 2)
    gather_gs(a, 1)
    stamp(a, 3)
    a('s_branch L_p0_join')

def wq_piece(a, lds_addr, src_off, vaddr='v8'):
    a(f's_mov_b32 m0, {lds_addr}')
    a(f's_add_u32 s91, s83, {src_off}')
    return a.vmem(f'buffer_load_dwordx4 {vaddr}, {WS}, s91 offen sc1 lds')

def role_wq(a):
    a.comment('==== role (wave 3): re-tile 40 rows of this member slice of Wqkv, then stream the whole slice into LDS')
    a.label('L_role_wq')
    a.vm = list(TOK['wq_vm']); a.lg = []
    tr_lane(a, 240)
    a('v_mul_u32_u24 v24, 40, v20'); a('v_lshl_add_u32 v24, v22, 3, v24'); a('v_add_u32 v24, v24, v23'); a(f'v_add_u32 v24, {L_STGQ}, v24')
    a('v_mul_u32_u24 v25, 40, v20'); a('v_add_u32 v25, 120, v25'); a('v_lshl_add_u32 v25, v22, 3, v25')
    a('v_mul_u32_u24 v28, 40, v22'); a('v_add_u32 v28, 32, v28'); a('v_cmp_eq_u32 vcc, 0, v20'); a('v_cndmask_b32 v25, v25, v28, vcc')
    a('v_and_b32 v28, 1, v22'); a('v_mul_u32_u24 v28, 40, v28'); a('v_add_u32 v28, 192, v28'); a('v_cmp_eq_u32 vcc, 3, v20'); a('v_cndmask_b32 v25, v25, v28, vcc')
    a('v_add_u32 v25, v25, v23'); a(f'v_add_u32 v25, {L_STGQ}, v25')
    a(f's_mul_i32 s12, {sM}, 153600'); a(f's_add_u32 s12, s12, {WQ_OFF}')
    a('v_lshlrev_b32 v26, 10, v20'); a('v_lshl_add_u32 v26, v21, 4, v26'); a('v_add_u32 v26, s12, v26')
    a('v_add_u32 v27, 4096, v26')
    a('v_mov_b32 v29, 256'); a('v_mov_b32 v30, 128'); a('v_cndmask_b32 v29, v29, v30, vcc')
    a('v_cmp_le_u32 s[74:75], 8, v21'); a('s_and_b64 vcc, vcc, s[74:75]'); a('v_mov_b32 v30, 0x40000000'); a('v_cndmask_b32 v27, v27, v30, vcc')
    a(f's_mul_i32 s84, {sSG}, 5')
    fstamp(a, 25)
    a.wait_vm(TOK['wq']); get_nonce(a)
    fstamp(a, 26)
    tk = []
    for t in range(5):
        for ab, v in ((0, 'v24'), (1, 'v25')):
            a.lds(f'ds_read_b64_tr_b16 {vr(32+8*t+4*ab,2)}, {v} offset:{8*240*t}')
            tk.append(a.lds(f'ds_read_b64_tr_b16 {vr(32+8*t+4*ab+2,2)}, {v} offset:{8*240*t+4*240}'))
    for t in range(5):
        a(f's_add_u32 s85, s84, {t}'); a('s_and_b32 s87, s85, 3'); a('s_lshr_b32 s86, s85, 2'); a('s_mul_i32 s86, s86, 7680')
        a('s_lshl_b32 s88, s87, 8'); a('v_add_u32 v9, s88, v26'); a('v_mad_u32_u24 v10, s87, v29, v27')
        a.wait_lg(tk[2*t+1])
        a.vmem(f'buffer_store_dwordx4 {vr(32+8*t,4)}, v9, {WS}, s86 offen sc1')
        a.vmem(f'buffer_store_dwordx4 {vr(32+8*t+4,4)}, v10, {WS}, s86 offen sc1')
    fstamp(a, 27)
    a.wait_all_vm()
    flag_store(a, 1)
    stamp(a, 1)
    a(f'v_lshl_add_u32 v5, {vL}, 4, {sM}'); a('v_lshl_add_u32 v5, v5, 2, 3'); a('v_lshlrev_b32 v5, 7, v5'); a(f'v_add_u32 v5, {FLAG_OFF}, v5')
    poll_flags(a, 'v5', 16, 1, 'v6')
    stamp(a, 2)
    a(f'v_lshlrev_b32 v8, 4, {vL}')
    a(f's_mul_i32 s83, {sM}, 153600'); a(f's_add_u32 s83, s83, {WQ_OFF}')
    toks = [wq_piece(a, 1024*q, 1024*q) for q in range(30*o.npre)]
    a.wait_vm(toks[29])
    stamp(a, 3)

def build():
    a = Asm()
    prologue(a)
    role_ln(a)
    role_wo(a)
    role_mod(a)
    role_wq(a)
    a.label('L_p0_join')
    a.reset_counts()
    a('s_barrier')
    a.label('L_p1')
    stamp(a, 4)
    from gen_p1 import phase1
    if o.stop >= 1: phase1(a, o)
    if o.stop >= 2:
        from gen_p2 import phase2
        tl = phase2(a, o)
        if o.stop == 2:
            a.wait_all_vm(); flag_store(a, 6)
    if o.stop >= 3:
        from gen_p3 import phase3
        phase3(a, o, tl)
    if o.stop >= 4:
        from gen_p4 import phase4
        phase4(a, o)
    a('s_waitcnt vmcnt(0) lgkmcnt(0)')
    if o.prof:
        stamp(a, 63)
        a('s_memtime s[100:101]'); a('s_waitcnt lgkmcnt(0)'); a(f'v_writelane_b32 {vPROF}, s100, 62')
        a('s_lshl_b32 s11, s2, 2')
        a(f's_add_u32 s11, s11, {sW}')
        a('s_lshl_b32 s11, s11, 8')
        a(f's_add_u32 s11, s11, {PROF_OFF}')
        a(f'v_lshlrev_b32 v1, 2, {vL}')
        a(f'buffer_store_dword {vPROF}, v1, {WS}, s11 offen')
        a('s_waitcnt vmcnt(0)')
    a.label('L_exit')
    a('s_endpgm')
    emit_slow(a)
    a.label('L_code_end')
    lines, nn = hazard_pass(a.items)
    return lines, nn

HEADER = open('adaLN_cond__sliding_local_dilated__geglu_ffn__prompt.s.ref').read().split('; Override launch')[0]

def emit(path):
    lines, nn = build()
    s = HEADER
    s += '; One persistent launch: 256 workgroups (one per CU), phases handed over through tagged flags in d_ws.\n'
    s += f'; @launch grid=(256,1,1) block=(256,1,1) lds={LDS_TOTAL}\n'
    s += '.amdgcn_target "amdgcn-amd-amdhsa--gfx950"\n.text\n'
    s += f'.globl {KNAME}\n.p2align 8\n.type {KNAME},@function\n{KNAME}:\n'
    s += '\n'.join(lines)+'\n'
    s += f'''.section .rodata,"a"
.p2align 6
.amdhsa_kernel {KNAME}
  .amdhsa_next_free_vgpr 512
  .amdhsa_next_free_sgpr 102
  .amdhsa_accum_offset 256
  .amdhsa_group_segment_fixed_size 0
  .amdhsa_kernarg_size 96
  .amdhsa_user_sgpr_count 2
  .amdhsa_user_sgpr_kernarg_segment_ptr 1
  .amdhsa_system_sgpr_workgroup_id_x 1
  .amdhsa_float_denorm_mode_32 3
.end_amdhsa_kernel
'''
    open(path, 'w').write(s)
    return len(lines), nn

if __name__ == '__main__':
    ap = argparse.ArgumentParser()
    ap.add_argument('-o', default='k.s')
    ap.add_argument('--stop', type=int, default=99)
    ap.add_argument('--prof', action='store_true')
    ap.add_argument('--npre', type=int, default=2)
    ap.add_argument('--fine', type=int, default=0)
    ap.add_argument('--cyc', type=int, default=0)
    ap.add_argument('--map2d', type=int, default=1)
    args = ap.parse_args()
    o.stop = args.stop; o.prof = args.prof; o.npre = args.npre; o.fine = args.fine; o.cyc = args.cyc; o.map2d = args.map2d
    n, nn = emit(args.o)
    print(f'{args.o}: {n} lines, {nn} inserted nops')
```

```python
import sys, argparse
if __name__ == '__main__': sys.modules['gen'] = sys.modules['__main__']
from asmcore import Asm, hazard_pass
from layout import *

KNAME = 'adaLN_cond__sliding_local_dilated__geglu_ffn__prompt_kernel'

class Opt:
    stop = 99
    prof = False
    npre = 2
    spin = 200000
o = Opt()

sW, sSG, sM, sXCD, sJ, sN, sROT, sFL = 's3', 's4', 's5', 's6', 's7', 's8', 's9', 's10'
sX = 's9'
P_X, P_WQKV, P_WO, P_BX, P_WG, P_WU, P_WD, P_C, P_WMOD, P_OUT, P_DBG, P_WS = [16+2*i for i in range(12)]
WS = 's[40:43]'; SA = 's[44:47]'; SB = 's[48:51]'; SC_ = 's[52:55]'
vL = 'v0'
vPROF = 'v255'

def srd(a, base, ptr, size):
    a(f's_mov_b32 s{base}, s{ptr}')
    a(f's_mov_b32 s{base+1}, s{ptr+1}')
    a(f's_mov_b32 s{base+2}, {size}')
    a(f's_mov_b32 s{base+3}, 0x20000')

def set_exec(a, mask):
    lo, hi = mask & 0xffffffff, mask >> 32
    if mask == (1 << 64)-1: a('s_mov_b64 exec, -1'); return
    a(f's_mov_b32 exec_lo, {hex(lo)}'); a(f's_mov_b32 exec_hi, {hex(hi)}')

def vr(b, n=1): return f'v{b}' if n == 1 else f'v[{b}:{b+n-1}]'
def ar(b, n=1): return f'a{b}' if n == 1 else f'a[{b}:{b+n-1}]'

_lab = [0]
def newlab(p):
    _lab[0] += 1; return f'L_{p}_{_lab[0]}'

def stamp(a, idx):
    if not o.prof: return
    if getattr(o, 'cyc', 0) == 2:
        a('s_memrealtime s[100:101]'); a('s_memtime s[72:73]')
        a('s_waitcnt lgkmcnt(0)'); a.lg = []
        a(f'v_writelane_b32 {vPROF}, s100, {idx}')
        if idx < 29: a(f'v_writelane_b32 {vPROF}, s72, {idx+32}')
        return
    a('s_memtime s[100:101]' if getattr(o, 'cyc', 0) else 's_memrealtime s[100:101]')
    a('s_waitcnt lgkmcnt(0)'); a.lg = []
    a(f'v_writelane_b32 {vPROF}, s100, {idx}')

def fstamp(a, idx):
    if getattr(o, 'fine', 0) == 2: stamp(a, idx)

def flag_store(a, phase):
    a(f's_add_u32 s72, {sN}, {phase}')
    a('v_mov_b32 v1, s72')
    a('s_mov_b64 exec, 1')
    a.vmem(f'buffer_store_dword v1, off, {WS}, {sFL} sc1', optional=True)
    a('s_mov_b64 exec, -1')

def poll_flags(a, vaddr, nlanes, phase, vtmp):
    L = newlab('poll'); Ld = newlab('polld')
    mask = (1 << nlanes)-1
    set_exec(a, mask)
    a(f's_add_u32 s72, {sN}, {phase}')
    a(f's_mov_b32 s73, {o.spin}')
    a.label(L)
    a(f'buffer_load_dword {vtmp}, {vaddr}, {WS}, 0 offen sc1')
    a('s_waitcnt vmcnt(0)'); a.vm = []
    a(f'v_subrev_u32 {vtmp}, s72, {vtmp}')
    a(f'v_cmp_lt_u32 vcc, {15-phase}, {vtmp}')
    a('s_sub_u32 s73, s73, 1')
    a('s_cmp_eq_u32 s73, 0')
    a(f's_cbranch_scc1 {Ld}')
    a(f's_cbranch_vccnz {L}')
    a.label(Ld)
    a('s_mov_b64 exec, -1')

SLOW = []
def flags_issue(a, vaddr, vdst, nlanes=64):
    return a.vmem(f'buffer_load_dword {vdst}, {vaddr}, {WS}, 0 offen sc1')

def flags_check(a, tok, vaddr, vdst, phase):
    a.wait_vm(tok)
    Ls = newlab('slow'); Lb = newlab('back')
    a(f's_add_u32 s72, {sN}, {phase}')
    a(f'v_subrev_u32 {vdst}, s72, {vdst}')
    a(f'v_cmp_lt_u32 vcc, {15-phase}, {vdst}')
    a(f's_cbranch_vccnz {Ls}')
    a.label(Lb)
    SLOW.append((Ls, Lb, vaddr, vdst, phase))

def emit_slow(a):
    for Ls, Lb, vaddr, vdst, phase in SLOW:
        L = newlab('spin')
        a.label(Ls)
        a(f's_mov_b32 s73, {o.spin}')
        a.label(L)
        a(f'buffer_load_dword {vdst}, {vaddr}, {WS}, 0 offen sc1')
        a('s_waitcnt vmcnt(0)')
        a(f'v_subrev_u32 {vdst}, s72, {vdst}')
        a(f'v_cmp_lt_u32 vcc, {15-phase}, {vdst}')
        a('s_sub_u32 s73, s73, 1'); a('s_cmp_eq_u32 s73, 0'); a(f's_cbranch_scc1 {Lb}')
        a(f's_cbranch_vccnz {L}')
        a(f's_branch {Lb}')

def prologue(a):
    a('s_cmp_ge_u32 s2, 256')
    a('s_cbranch_scc1 L_exit')
    a('s_load_dwordx16 s[16:31], s[0:1], 0')
    a('s_load_dwordx8 s[32:39], s[0:1], 64')
    a('s_getpc_b64 s[14:15]')
    a.label('L_pc')
    a('v_lshlrev_b32 v3, 7, v0')
    a('v_min_u32 v3, (L_code_end-L_pc-4), v3')
    a('global_load_dword v254, v3, s[14:15]')
    a('v_lshrrev_b32 v1, 6, v0')
    a('v_and_b32 v0, 63, v0')
    a(f'v_readfirstlane_b32 {sW}, v1')
    a('v_and_b32 v252, 15, v0'); a('v_lshl_add_u32 v252, v1, 4, v252'); a('v_lshlrev_b32 v252, 7, v252')
    a(f's_and_b32 {sXCD}, s2, 7')
    a(f's_lshr_b32 {sJ}, s2, 3')
    if getattr(o, 'map2d', 1):
        a(f's_lshr_b32 {sSG}, {sXCD}, 1'); a(f's_lshl_b32 {sSG}, {sSG}, 2'); a(f's_lshr_b32 s11, {sJ}, 3'); a(f's_add_u32 {sSG}, {sSG}, s11')
        a(f's_and_b32 {sM}, {sJ}, 3'); a(f's_and_b32 s11, {sXCD}, 1'); a('s_lshl_b32 s11, s11, 2'); a(f's_add_u32 {sM}, {sM}, s11')
        a(f's_and_b32 s11, {sJ}, 4'); a('s_lshl_b32 s11, s11, 1'); a(f's_add_u32 {sM}, {sM}, s11')
    else:
        a(f's_and_b32 {sM}, {sJ}, 15')
        a(f's_lshr_b32 s11, {sJ}, 4')
        a(f's_lshl_b32 {sSG}, {sXCD}, 1')
        a(f's_add_u32 {sSG}, {sSG}, s11')
    a(f's_lshl_b32 {sX}, {sSG}, 4'); a(f's_add_u32 {sX}, {sX}, {sM}')
    a('s_mov_b32 s98, 0x05040100'); a('s_mov_b32 s99, 0x07060302')
    a(f's_lshl_b32 s11, {sSG}, 4')
    a(f's_add_u32 s11, s11, {sM}')
    a('s_lshl_b32 s11, s11, 2')
    a(f's_add_u32 s11, s11, {sW}')
    a('s_lshl_b32 s11, s11, 7')
    a(f's_add_u32 {sFL}, s11, {FLAG_OFF}')
    if o.prof:
        a(f'v_mov_b32 {vPROF}, 0')
    a('s_waitcnt lgkmcnt(0)')
    srd(a, 40, P_WS, WS_USED)
    stamp(a, 0)
    if o.prof and getattr(o, 'cyc', 0) != 2:
        a('s_memtime s[100:101]'); a('s_waitcnt lgkmcnt(0)'); a(f'v_writelane_b32 {vPROF}, s100, 61')
    a(f'buffer_load_dword v251, off, {WS}, 0 sc1')
    t_nonce = 'nonce'
    a(f's_cmp_eq_u32 {sW}, 1'); a('s_cbranch_scc1 L_ld1')
    a(f's_cmp_eq_u32 {sW}, 2'); a('s_cbranch_scc1 L_ld2')
    a(f's_cmp_eq_u32 {sW}, 3'); a('s_cbranch_scc1 L_ld3')
    ld_ln(a); a('s_branch L_role_ln')
    a.label('L_ld1'); ld_wo(a); a('s_branch L_role_wo')
    a.label('L_ld2'); ld_mod(a); a('s_branch L_role_mod')
    a.label('L_ld3'); ld_wq(a); a('s_branch L_role_wq')

TOK = {}
def ld_ln(a):
    a.reset_counts()
    srd(a, 44, P_X, S*D*2)
    a(f's_lshl_b32 s11, {sSG}, 4'); a(f's_add_u32 s11, s11, {sM}'); a(f's_mul_i32 s11, s11, {8*1280}')
    a(f'v_and_b32 v5, 7, {vL}'); a(f'v_lshrrev_b32 v6, 3, {vL}')
    a('v_mul_u32_u24 v7, 1280, v5'); a('v_lshl_add_u32 v7, v6, 4, v7')
    TOK['x'] = [a.vmem(f'buffer_load_dwordx4 {vr(8+4*t,4)}, v7, {SA}, s11 offen offset:{128*t}') for t in range(10)]
    TOK['x_vm'] = list(a.vm)

def ld_wo(a):
    a.reset_counts()
    srd(a, 44, P_WO, D*D*2)
    a(f's_lshr_b32 s84, {sM}, 3')
    a(f's_mul_i32 s85, {sSG}, 3'); a(f's_lshl_b32 s86, {sSG}, 1'); a('s_add_u32 s86, s86, 48')
    a('s_cmp_eq_u32 s84, 0'); a('s_cselect_b32 s85, s85, s86')
    a(f'v_mul_u32_u24 v5, 6554, {vL}'); a('v_lshrrev_b32 v5, 16, v5'); a('v_mul_u32_u24 v6, 10, v5'); a(f'v_sub_u32 v6, {vL}, v6')
    a('v_mul_u32_u24 v5, 1280, v5'); a('v_lshl_add_u32 v5, v6, 4, v5')
    a(f's_mul_i32 s11, s85, {8*1280}'); a(f's_and_b32 s12, {sM}, 7'); a('s_mul_i32 s12, s12, 160'); a('s_add_u32 s11, s11, s12')
    set_exec(a, (1 << 60)-1)
    for q in range(4):
        a(f's_mov_b32 m0, {L_STGO+960*q}')
        TOK['wo'] = a.vmem(f'buffer_load_dwordx4 v5, {SA}, s11 offen lds')
        if q < 3: a(f's_add_u32 s11, s11, {6*1280}')
    set_exec(a, (1 << 64)-1)
    TOK['wo_vm'] = list(a.vm)

def ld_mod(a):
    a.reset_counts()
    a('s_mul_i32 s84, s2, 1093'); a('s_lshr_b32 s84, s84, 16')
    a('s_mul_i32 s85, s84, 60'); a('s_sub_u32 s85, s2, s85')
    srd(a, 44, P_C, D*2)
    srd(a, 48, P_WMOD, D*6*D*2)
    a('s_mul_i32 s13, s84, 320')
    a(f'v_lshlrev_b32 v5, 3, {vL}')
    TOK['c'] = a.vmem(f'buffer_load_dwordx2 v[8:9], v5, {SA}, s13 offen')
    a(f'v_lshrrev_b32 v6, 3, {vL}'); a(f'v_and_b32 v7, 7, {vL}'); a('v_mul_u32_u24 v6, 7680, v6'); a('v_lshl_add_u32 v6, v7, 4, v6')
    a(f's_mul_i32 s13, s84, {160*7680}'); a('s_lshl_b32 s72, s85, 7'); a('s_add_u32 s13, s13, s72')
    a('s_cmp_lt_u32 s2, 240'); a('s_cselect_b32 s13, s13, 0x40000000')
    for t in range(20):
        a(f's_mov_b32 m0, {L_STG+1024*t}')
        TOK['wm'] = a.vmem(f'buffer_load_dwordx4 v6, {SB}, s13 offen lds')
        if t < 19: a(f's_add_u32 s13, s13, {8*7680}')
    TOK['mod_vm'] = list(a.vm)

def ld_wq(a):
    a.reset_counts()
    srd(a, 44, P_WQKV, D*3*D*2)
    a(f'v_mul_u32_u24 v5, 4370, {vL}'); a('v_lshrrev_b32 v5, 16, v5')
    a('v_mul_u32_u24 v6, 15, v5'); a(f'v_sub_u32 v6, {vL}, v6')
    a('v_mul_u32_u24 v7, 13108, v6'); a('v_lshrrev_b32 v7, 16, v7')
    a('v_mul_u32_u24 v5, 3840, v5'); a('v_lshl_add_u32 v5, v6, 4, v5'); a('v_mul_u32_u24 v7, 1200, v7'); a('v_add_u32 v5, v5, v7')
    a(f's_mul_i32 s11, {sSG}, {40*3840}'); a(f's_mul_i32 s12, {sM}, 80'); a('s_add_u32 s11, s11, s12')
    set_exec(a, (1 << 60)-1)
    for q in range(10):
        a(f's_mov_b32 m0, {L_STGQ+960*q}')
        TOK['wq'] = a.vmem(f'buffer_load_dwordx4 v5, {SA}, s11 offen lds')
        if q < 9: a(f's_add_u32 s11, s11, {4*3840}')
    set_exec(a, (1 << 64)-1)
    TOK['wq_vm'] = list(a.vm)

def cpf(a, label, off=0):
    a(f'v_add_u32 v253, ({label}-L_pc+{off}), v252')
    a('v_min_u32 v253, (L_code_end-L_pc-4), v253')
    a.vmem('global_load_dword v254, v253, s[14:15]', optional=True)

def get_nonce(a):
    a('v_readfirstlane_b32 s11, v251')
    a(f's_mul_i32 {sN}, s11, {hex(LCG_A)}')
    a(f's_add_u32 {sN}, {sN}, {hex(LCG_C)}')

def row_reduce16(a, v, t):
    for r in (8, 4, 2, 1):
        a(f'v_add_f32_dpp {v}, {v}, {v} row_ror:{r} row_mask:0xf bank_mask:0xf')

def pk(a, op, d, x, y, z=None):
    a(f'v_pk_{op}_f32 {vr(d,2)}, {vr(x,2)}, {vr(y,2)}' + (f', {vr(z,2)}' if z is not None else ''))

def pkb(op, d, *src):
    ops = []; sel = []; selhi = []
    for x in src:
        if isinstance(x, tuple):
            n = x[1]; ops.append(vr(n & ~1, 2)); sel.append(n & 1); selhi.append(n & 1)
        else:
            ops.append(vr(x, 2)); sel.append(0); selhi.append(1)
    t = f'v_pk_{op}_f32 {vr(d,2)}, ' + ', '.join(ops)
    if any(sel): t += ' op_sel:[' + ','.join(map(str, sel)) + ']'
    if not all(selhi): t += ' op_sel_hi:[' + ','.join(map(str, selhi)) + ']'
    return t

def cross8(a, v, t0, t1):
    a(f'v_add_f32_dpp {v}, {v}, {v} row_ror:8 row_mask:0xf bank_mask:0xf')
    for sw in ('v_permlane16_swap_b32', 'v_permlane32_swap_b32'):
        a(f'v_mov_b32 {t0}, {v}'); a(f'v_mov_b32 {t1}, {v}'); a(f'{sw} {t0}, {t1}'); a(f'v_add_f32 {v}, {t0}, {t1}')

def role_ln(a):
    a.comment('==== role (wave 0): LayerNorm of 8 rows -> xhat (f16, fragment-major)')
    a.label('L_role_ln')
    a.vm = list(TOK['x_vm']); a.lg = []
    toks = TOK['x']
    X = 8; U = 48
    a(f's_and_b32 s12, {sM}, 1'); a('s_lshl_b32 s12, s12, 3'); a('v_add_u32 v5, s12, v5'); a('v_lshlrev_b32 v5, 4, v5'); a('v_lshl_add_u32 v5, v6, 8, v5')
    a(f's_lshr_b32 s12, {sM}, 1'); a(f's_lshl_b32 s13, {sSG}, 3'); a('s_add_u32 s12, s12, s13'); a(f's_mul_i32 s12, s12, {TILE_B}'); a(f's_add_u32 s12, s12, {XH_OFF}')
    a('s_mov_b32 s13, 0xffff0000')
    fstamp(a, 25)
    for t in range(10):
        a.wait_vm(toks[t])
        if t == 0: get_nonce(a); fstamp(a, 26)
        for d in range(4):
            a(f'v_lshlrev_b32 {vr(U+8*t+2*d)}, 16, {vr(X+4*t+d)}')
            a(f'v_and_b32 {vr(U+8*t+2*d+1)}, s13, {vr(X+4*t+d)}')
    A = 128
    for k in range(4): pk(a, 'add', A+2*k, U+2*k, U+8+2*k)
    for e in range(8, 40): pk(a, 'add', A+2*(e % 4), A+2*(e % 4), U+2*e)
    pk(a, 'add', A, A, A+2); pk(a, 'add', A+4, A+4, A+6); pk(a, 'add', A, A, A+4)
    a(f'v_add_f32 v136, {vr(A)}, {vr(A+1)}')
    cross8(a, 'v136', 'v138', 'v139')
    a(f'v_mul_f32 v136, {hex(f2u(-1.0/640))}, v136'); a('v_mov_b32 v137, v136')
    for e in range(40): pk(a, 'add', U+2*e, U+2*e, 136)
    for k in range(4): pk(a, 'mul', A+2*k, U+2*k, U+2*k)
    for e in range(4, 40): pk(a, 'fma', A+2*(e % 4), U+2*e, U+2*e, A+2*(e % 4))
    pk(a, 'add', A, A, A+2); pk(a, 'add', A+4, A+4, A+6); pk(a, 'add', A, A, A+4)
    a(f'v_add_f32 v136, {vr(A)}, {vr(A+1)}')
    cross8(a, 'v136', 'v138', 'v139')
    a(f'v_mov_b32 v137, {hex(f2u(1e-5))}'); a(f'v_fmac_f32 v137, {hex(f2u(1.0/640))}, v136')
    a('v_rsq_f32 v136, v137'); a('v_mov_b32 v137, v136')
    fstamp(a, 27)
    for t in range(10):
        for d in range(4):
            pk(a, 'mul', U+8*t+2*d, U+8*t+2*d, 136)
        for d in range(4):
            a(f'v_cvt_pk_f16_f32 {vr(X+4*t+d)}, {vr(U+8*t+2*d)}, {vr(U+8*t+2*d+1)}')
        a.vmem(f'buffer_store_dwordx4 {vr(X+4*t,4)}, v5, {WS}, s12 offen offset:{2048*(t & 1)} sc1')
        if t & 1 and t < 9: a('s_add_u32 s12, s12, 4096')
    a.wait_all_vm()
    flag_store(a, 1)
    cpf(a, 'L_p1'); cpf(a, 'L_p1', 8192)
    stamp(a, 1)
    a(f's_lshl_b32 s11, {sSG}, 4'); a(f'v_add_u32 v7, s11, {vL}')
    a(f's_cmp_eq_u32 {sSG}, 0'); a('s_cselect_b32 s12, 16, 18')
    a('v_subrev_u32 v8, s12, v7'); a(f'v_cmp_gt_u32 vcc, 16, {vL}'); a('v_cndmask_b32 v7, v8, v7, vcc')
    a('v_lshlrev_b32 v7, 2, v7')
    a(f'v_subrev_u32 v8, 18, {vL}'); a(f'v_lshl_add_u32 v8, v8, 4, {sM}'); a('v_lshl_add_u32 v8, v8, 2, 3')
    a(f'v_cmp_gt_u32 vcc, 18, {vL}'); a('v_cndmask_b32 v7, v8, v7, vcc')
    a('v_lshlrev_b32 v7, 7, v7'); a(f'v_add_u32 v7, {FLAG_OFF}, v7')
    poll_flags(a, 'v7', 34, 1, 'v8')
    stamp(a, 2)
    a(f'v_lshlrev_b32 v8, 4, {vL}')
    a(f's_mul_i32 s83, {sM}, 153600'); a(f's_add_u32 s83, s83, {WQ_OFF}')
    for q in range(60, 120): wq_piece(a, 1024*q, 1024*q)
    stamp(a, 3)
    a('s_branch L_p0_join')

def tr_lane(a, pitch):
    a(f'v_lshrrev_b32 v20, 4, {vL}'); a(f'v_and_b32 v21, 15, {vL}'); a('v_and_b32 v22, 3, v21')
    a('v_lshrrev_b32 v23, 2, v21'); a(f'v_mul_u32_u24 v23, {pitch}, v23')

def role_wo(a):
    a.comment('==== role (wave 1): re-tile up to 3 k-chunks of W_o, then gather sa')
    a.label('L_role_wo')
    a.vm = list(TOK['wo_vm']); a.lg = []
    tr_lane(a, 160)
    a('v_lshlrev_b32 v24, 5, v20'); a('v_lshl_add_u32 v24, v22, 3, v24'); a('v_add_u32 v24, v24, v23'); a(f'v_add_u32 v24, {L_STGO}, v24')
    a('v_lshlrev_b32 v25, 3, v22'); a('v_add_u32 v25, v25, v23'); a(f'v_add_u32 v25, {L_STGO+128}, v25')
    a(f's_and_b32 s12, {sM}, 7'); a('s_mul_i32 s12, s12, 102400'); a(f's_add_u32 s12, s12, {WO_OFF}')
    a('v_mul_u32_u24 v26, 20480, v20'); a('v_lshl_add_u32 v26, v21, 4, v26'); a('v_add_u32 v26, s12, v26')
    a('v_lshlrev_b32 v27, 4, v21'); a(f'v_add_u32 v27, {4*20480}, v27'); a('v_add_u32 v27, s12, v27')
    a('v_mov_b32 v28, 0x40000000'); a(f'v_cmp_gt_u32 vcc, 16, {vL}'); a('v_cndmask_b32 v27, v28, v27, vcc')
    a.wait_vm(TOK['wo']); get_nonce(a)
    tk = []
    for t in range(3):
        for ab, v in ((0, 'v24'), (1, 'v25')):
            a.lds(f'ds_read_b64_tr_b16 {vr(32+8*t+4*ab,2)}, {v} offset:{8*160*t}')
            tk.append(a.lds(f'ds_read_b64_tr_b16 {vr(32+8*t+4*ab+2,2)}, {v} offset:{8*160*t+4*160}'))
    for t in range(3):
        a(f's_add_u32 s86, s85, {t}'); a('s_and_b32 s87, s86, 3'); a('s_lshr_b32 s86, s86, 2'); a('s_lshl_b32 s86, s86, 10'); a('s_lshl_b32 s87, s87, 8'); a('s_add_u32 s86, s86, s87')
        if t == 2: a('s_cmp_eq_u32 s84, 0'); a('s_cselect_b32 s86, s86, 0x40000000')
        a.wait_lg(tk[2*t+1])
        a.vmem(f'buffer_store_dwordx4 {vr(32+8*t,4)}, v26, {WS}, s86 offen sc1')
        a.vmem(f'buffer_store_dwordx4 {vr(32+8*t+4,4)}, v27, {WS}, s86 offen sc1')
    stamp(a, 1)
    gather_gs(a, 0)
    stamp(a, 3)
    a('s_branch L_p0_join')

def f2u(x):
    import struct
    return struct.unpack('<I', struct.pack('<f', x))[0]

def gather_vec(a, colbase_s, nload, V, plus_one, lds_addr_v, label):
    L = newlab('gath'); Ld = newlab('gathd')
    a(f'v_lshlrev_b32 v5, 4, {vL}')
    a(f's_lshl_b32 s11, {colbase_s}, 3')
    a(f's_add_u32 s11, s11, {GRAN_OFF}')
    a(f's_mov_b32 s73, {o.spin}')
    a.label(L)
    a('s_mov_b32 s12, s11')
    for kq in range(4):
        for t in range(nload):
            a(f'buffer_load_dwordx4 {vr(V+(kq*nload+t)*4,4)}, v5, {WS}, s12 offen offset:{1024*t if 1024*t < 4096 else 0} sc1' if t < 4 else
              f'buffer_load_dwordx4 {vr(V+(kq*nload+t)*4,4)}, v5, {WS}, s13 offen sc1')
            if t == 3 and nload > 4: a(f's_add_u32 s13, s12, 4096')
        if kq < 3: a(f's_add_u32 s12, s12, {3840*8}')
    a('s_waitcnt vmcnt(0)'); a.vm = []
    n = 4*nload
    a(f'v_max_u32 v6, {vr(V+1)}, {vr(V+3)}')
    a(f'v_min_u32 v7, {vr(V+1)}, {vr(V+3)}')
    for q in range(1, n):
        a(f'v_max3_u32 v6, v6, {vr(V+4*q+1)}, {vr(V+4*q+3)}')
        a(f'v_min3_u32 v7, v7, {vr(V+4*q+1)}, {vr(V+4*q+3)}')
    a(f'v_cmp_ne_u32 vcc, {sN}, v6')
    a(f'v_cmp_ne_u32 s[74:75], {sN}, v7')
    a('s_or_b64 vcc, vcc, s[74:75]')
    a('s_sub_u32 s73, s73, 1')
    a('s_cmp_eq_u32 s73, 0')
    a(f's_cbranch_scc1 {Ld}')
    a(f's_cbranch_vccnz {L}')
    a.label(Ld)
    fstamp(a, 29)
    for t in range(nload):
        for h in (0, 2):
            b0 = V+4*t+h
            a(f'v_add_f32 {vr(b0)}, {vr(b0)}, {vr(V+4*(nload+t)+h)}')
            a(f'v_add_f32 {vr(V+4*(2*nload+t)+h)}, {vr(V+4*(2*nload+t)+h)}, {vr(V+4*(3*nload+t)+h)}')
            a(f'v_add_f32 {vr(b0)}, {vr(b0)}, {vr(V+4*(2*nload+t)+h)}')
    a('s_mov_b32 s13, 0xffff0000')
    for t in range(nload):
        p = V+4*t
        a(f'v_cvt_pk_bf16_f32 {vr(p+1)}, {vr(p)}, {vr(p+2)}')
        if plus_one:
            a(f'v_lshlrev_b32 {vr(p)}, 16, {vr(p+1)}')
            a(f'v_and_b32 {vr(p+2)}, s13, {vr(p+1)}')
            a(f'v_add_f32 {vr(p)}, 1.0, {vr(p)}')
            a(f'v_add_f32 {vr(p+2)}, 1.0, {vr(p+2)}')
            a(f'v_cvt_pk_bf16_f32 {vr(p+1)}, {vr(p)}, {vr(p+2)}')
        a(f'v_lshlrev_b32 {vr(p+2)}, 16, {vr(p+1)}')
        a(f'v_and_b32 {vr(p+3)}, s13, {vr(p+1)}')

def gather_gs(a, which):
    V = 8
    L = newlab('probe'); Ld = newlab('probed')
    a(f'v_mul_u32_u24 v5, 6554, {vL}'); a('v_lshrrev_b32 v5, 16, v5')
    a('v_mul_u32_u24 v6, 10, v5'); a(f'v_sub_u32 v6, {vL}, v6')
    a('v_mul_u32_u24 v5, 3840, v5'); a('v_lshl_add_u32 v5, v6, 6, v5'); a(f'v_add_u32 v5, {640*which+63}, v5')
    a('v_lshlrev_b32 v5, 3, v5'); a(f'v_add_u32 v5, {GRAN_OFF+4}, v5')
    set_exec(a, (1 << 40)-1)
    a(f's_mov_b32 s73, {o.spin}')
    a.label(L)
    a(f'buffer_load_dword v6, v5, {WS}, 0 offen sc1')
    a('s_waitcnt vmcnt(0)'); a.vm = []
    a(f'v_cmp_ne_u32 vcc, {sN}, v6')
    a('s_sub_u32 s73, s73, 1'); a('s_cmp_eq_u32 s73, 0'); a(f's_cbranch_scc1 {Ld}'); a(f's_cbranch_vccnz {L}')
    a.label(Ld)
    set_exec(a, (1 << 64)-1)
    fstamp(a, 28)
    a(f's_mov_b32 s76, {640*which}')
    gather_vec(a, 's76', 5, V, which == 1, None, None)
    a(f'v_lshlrev_b32 v5, 3, {vL}')
    a(f'v_add_u32 v5, {L_G1 if which else L_S1}, v5')
    for t in range(5):
        a.lds(f'ds_write_b64 v5, {vr(V+4*t+2,2)} offset:{512*t}')
    a.wait_all_lg()

def role_mod(a):
    a.comment('==== role: mod partial (wave 2): silu(c)[160 kq..] @ w_mod[160 rows, 64 cols] via MFMA')
    a.label('L_role_mod')
    a.vm = list(TOK['mod_vm']); a.lg = []
    tc, td = TOK['c'], TOK['wm']
    a('s_mov_b32 s11, s84'); a('s_mov_b32 s12, s85')
    a('s_mul_i32 s13, s11, 3840')
    a('s_lshl_b32 s72, s12, 6')
    a('s_add_u32 s13, s13, s72')
    a('s_lshl_b32 s13, s13, 3')
    a(f's_add_u32 s76, s13, {GRAN_OFF}'); a('s_cmp_lt_u32 s2, 240'); a('s_cselect_b32 s76, s76, 0x40000000')
    a(f'v_lshrrev_b32 v20, 4, {vL}')
    a('v_lshlrev_b32 v21, 5, v20')
    a(f'v_and_b32 v22, 15, {vL}')
    a('v_lshrrev_b32 v23, 2, v22')
    a('v_lshl_add_u32 v23, v20, 3, v23')
    a('v_lshlrev_b32 v23, 7, v23')
    a('v_and_b32 v24, 3, v22')
    a('v_lshl_add_u32 v23, v24, 3, v23')
    a(f'v_add_u32 v23, {L_STG}, v23')
    a('v_lshlrev_b32 v25, 4, v20')
    a(f'v_add_u32 v25, {L_SC}, v25')
    fstamp(a, 25)
    a.wait_vm(tc)
    get_nonce(a)
    fstamp(a, 26)
    a('s_mov_b32 s13, 0xffff0000')
    a('v_lshlrev_b32 v10, 16, v8'); a('v_and_b32 v11, s13, v8')
    a('v_lshlrev_b32 v12, 16, v9'); a('v_and_b32 v13, s13, v9')
    for k in range(4): a(f'v_mul_f32 {vr(14+k)}, {hex(f2u(-1.4426950408889634))}, {vr(10+k)}')
    for k in range(4): a(f'v_exp_f32 {vr(14+k)}, {vr(14+k)}')
    for k in range(4): a(f'v_add_f32 {vr(14+k)}, 1.0, {vr(14+k)}')
    for k in range(4): a(f'v_rcp_f32 {vr(14+k)}, {vr(14+k)}')
    for k in range(4): a(f'v_mul_f32 {vr(10+k)}, {vr(10+k)}, {vr(14+k)}')
    a('v_cvt_pk_bf16_f32 v10, v10, v11'); a('v_cvt_pk_bf16_f32 v11, v12, v13')
    a(f'v_add_u32 v5, {L_SC}, v5')
    a.lds('ds_write_b64 v5, v[10:11]')
    a.wait_all_lg()
    a.wait_vm(td)
    stamp(a, 1)
    ACC = 32; WF = 48; VF = 64
    for s in range(5):
        vf = VF+4*(s & 1)
        tv = a.lds(f'ds_read_b128 {vr(vf,4)}, v25 offset:{64*s}')
        tw = []
        for nt in range(4):
            a.lds(f'ds_read_b64_tr_b16 {vr(WF+4*nt,2)}, v23 offset:{4096*s+32*nt}')
            tw.append(a.lds(f'ds_read_b64_tr_b16 {vr(WF+4*nt+2,2)}, v23 offset:{4096*s+32*nt+512}'))
        for nt in range(4):
            a.wait_lg(tw[nt])
            c = '0' if s == 0 else vr(ACC+4*nt, 4)
            a(f'v_mfma_f32_16x16x32_bf16 {vr(ACC+4*nt,4)}, {vr(WF+4*nt,4)}, {vr(vf,4)}, {c}')
    a('v_cmp_eq_u32 vcc, 1, v22'); a('v_lshl_add_u32 v21, v22, 4, v21')
    set_exec(a, 0x0003000300030003)
    for nt in range(4):
        b = 72+4*nt
        a(f'v_cndmask_b32 {vr(b)}, {vr(ACC+4*nt)}, {vr(ACC+4*nt+2)}, vcc'); a(f'v_mov_b32 {vr(b+1)}, {sN}')
        a(f'v_cndmask_b32 {vr(b+2)}, {vr(ACC+4*nt+1)}, {vr(ACC+4*nt+3)}, vcc'); a(f'v_mov_b32 {vr(b+3)}, {sN}')
        a.vmem(f'buffer_store_dwordx4 {vr(b,4)}, v21, {WS}, s76 offen offset:{128*nt} sc1')
    a('s_mov_b64 exec, -1')
    a.reset_counts()
    stamp(a, 2)
    gather_gs(a, 1)
    stamp(a, 3)
    a('s_branch L_p0_join')

def wq_piece(a, lds_addr, src_off, vaddr='v8'):
    a(f's_mov_b32 m0, {lds_addr}')
    a(f's_add_u32 s91, s83, {src_off}')
    return a.vmem(f'buffer_load_dwordx4 {vaddr}, {WS}, s91 offen sc1 lds')

def role_wq(a):
    a.comment('==== role (wave 3): re-tile 40 rows of this member slice of Wqkv, then stream the whole slice into LDS')
    a.label('L_role_wq')
    a.vm = list(TOK['wq_vm']); a.lg = []
    tr_lane(a, 240)
    a('v_mul_u32_u24 v24, 40, v20'); a('v_lshl_add_u32 v24, v22, 3, v24'); a('v_add_u32 v24, v24, v23'); a(f'v_add_u32 v24, {L_STGQ}, v24')
    a('v_mul_u32_u24 v25, 40, v20'); a('v_add_u32 v25, 120, v25'); a('v_lshl_add_u32 v25, v22, 3, v25')
    a('v_mul_u32_u24 v28, 40, v22'); a('v_add_u32 v28, 32, v28'); a('v_cmp_eq_u32 vcc, 0, v20'); a('v_cndmask_b32 v25, v25, v28, vcc')
    a('v_and_b32 v28, 1, v22'); a('v_mul_u32_u24 v28, 40, v28'); a('v_add_u32 v28, 192, v28'); a('v_cmp_eq_u32 vcc, 3, v20'); a('v_cndmask_b32 v25, v25, v28, vcc')
    a('v_add_u32 v25, v25, v23'); a(f'v_add_u32 v25, {L_STGQ}, v25')
    a(f's_mul_i32 s12, {sM}, 153600'); a(f's_add_u32 s12, s12, {WQ_OFF}')
    a('v_lshlrev_b32 v26, 10, v20'); a('v_lshl_add_u32 v26, v21, 4, v26'); a('v_add_u32 v26, s12, v26')
    a('v_add_u32 v27, 4096, v26')
    a('v_mov_b32 v29, 256'); a('v_mov_b32 v30, 128'); a('v_cndmask_b32 v29, v29, v30, vcc')
    a('v_cmp_le_u32 s[74:75], 8, v21'); a('s_and_b64 vcc, vcc, s[74:75]'); a('v_mov_b32 v30, 0x40000000'); a('v_cndmask_b32 v27, v27, v30, vcc')
    a(f's_mul_i32 s84, {sSG}, 5')
    fstamp(a, 25)
    a.wait_vm(TOK['wq']); get_nonce(a)
    fstamp(a, 26)
    tk = []
    for t in range(5):
        for ab, v in ((0, 'v24'), (1, 'v25')):
            a.lds(f'ds_read_b64_tr_b16 {vr(32+8*t+4*ab,2)}, {v} offset:{8*240*t}')
            tk.append(a.lds(f'ds_read_b64_tr_b16 {vr(32+8*t+4*ab+2,2)}, {v} offset:{8*240*t+4*240}'))
    for t in range(5):
        a(f's_add_u32 s85, s84, {t}'); a('s_and_b32 s87, s85, 3'); a('s_lshr_b32 s86, s85, 2'); a('s_mul_i32 s86, s86, 7680')
        a('s_lshl_b32 s88, s87, 8'); a('v_add_u32 v9, s88, v26'); a('v_mad_u32_u24 v10, s87, v29, v27')
        a.wait_lg(tk[2*t+1])
        a.vmem(f'buffer_store_dwordx4 {vr(32+8*t,4)}, v9, {WS}, s86 offen sc1')
        a.vmem(f'buffer_store_dwordx4 {vr(32+8*t+4,4)}, v10, {WS}, s86 offen sc1')
    fstamp(a, 27)
    a.wait_all_vm()
    flag_store(a, 1)
    stamp(a, 1)
    a(f'v_lshl_add_u32 v5, {vL}, 4, {sM}'); a('v_lshl_add_u32 v5, v5, 2, 3'); a('v_lshlrev_b32 v5, 7, v5'); a(f'v_add_u32 v5, {FLAG_OFF}, v5')
    poll_flags(a, 'v5', 16, 1, 'v6')
    stamp(a, 2)
    a(f'v_lshlrev_b32 v8, 4, {vL}')
    a(f's_mul_i32 s83, {sM}, 153600'); a(f's_add_u32 s83, s83, {WQ_OFF}')
    toks = [wq_piece(a, 1024*q, 1024*q) for q in range(30*o.npre)]
    a.wait_vm(toks[29])
    stamp(a, 3)

def build():
    a = Asm()
    prologue(a)
    role_ln(a)
    role_wo(a)
    role_mod(a)
    role_wq(a)
    a.label('L_p0_join')
    a.reset_counts()
    a('s_barrier')
    a.label('L_p1')
    stamp(a, 4)
    from gen_p1 import phase1
    if o.stop >= 1: phase1(a, o)
    if o.stop >= 2:
        from gen_p2 import phase2
        tl = phase2(a, o)
        if o.stop == 2:
            a.wait_all_vm(); flag_store(a, 6)
    if o.stop >= 3:
        from gen_p3 import phase3
        phase3(a, o, tl)
    if o.stop >= 4:
        from gen_p4 import phase4
        phase4(a, o)
    a('s_waitcnt vmcnt(0) lgkmcnt(0)')
    if o.prof:
        stamp(a, 63)
        a('s_memtime s[100:101]'); a('s_waitcnt lgkmcnt(0)'); a(f'v_writelane_b32 {vPROF}, s100, 62')
        if getattr(o, 'dbg', 0):
            Ld = newlab('nodbg')
            a(f's_or_b32 s11, s2, {sW}'); a('s_cmp_lg_u32 s11, 0'); a(f's_cbranch_scc1 {Ld}')
            srd(a, 44, P_DBG, 256)
            a(f'v_readlane_b32 s12, {vPROF}, 0')
            for n, k in enumerate([4, 5, 6, 9, 10, 13, 14, 16, 17, 19, 21, 22, 23, 24, 63, 1]):
                a(f'v_readlane_b32 s13, {vPROF}, {k}'); a('s_sub_u32 s13, s13, s12'); a('v_mov_b32 v1, s13')
                a(f'buffer_store_dword v1, off, {SA}, 0 offset:{4*n}')
            a('s_waitcnt vmcnt(0)')
            a.label(Ld)
        a('s_lshl_b32 s11, s2, 2')
        a(f's_add_u32 s11, s11, {sW}')
        a('s_lshl_b32 s11, s11, 8')
        a(f's_add_u32 s11, s11, {PROF_OFF}')
        a(f'v_lshlrev_b32 v1, 2, {vL}')
        a(f'buffer_store_dword {vPROF}, v1, {WS}, s11 offen')
        a('s_waitcnt vmcnt(0)')
    a.label('L_exit')
    a('s_endpgm')
    emit_slow(a)
    a.label('L_code_end')
    lines, nn = hazard_pass(a.items)
    return lines, nn

HEADER = open('adaLN_cond__sliding_local_dilated__geglu_ffn__prompt.s.ref').read().split('; Override launch')[0]

def emit(path):
    lines, nn = build()
    s = HEADER
    s += '; One persistent launch: 256 workgroups (one per CU), phases handed over through tagged flags in d_ws.\n'
    s += f'; @launch grid=(256,1,1) block=(256,1,1) lds={LDS_TOTAL}\n'
    s += '.amdgcn_target "amdgcn-amd-amdhsa--gfx950"\n.text\n'
    s += f'.globl {KNAME}\n.p2align 8\n.type {KNAME},@function\n{KNAME}:\n'
    s += '\n'.join(lines)+'\n'
    s += f'''.section .rodata,"a"
.p2align 6
.amdhsa_kernel {KNAME}
  .amdhsa_next_free_vgpr 512
  .amdhsa_next_free_sgpr 102
  .amdhsa_accum_offset 256
  .amdhsa_group_segment_fixed_size 0
  .amdhsa_kernarg_size 96
  .amdhsa_user_sgpr_count 2
  .amdhsa_user_sgpr_kernarg_segment_ptr 1
  .amdhsa_system_sgpr_workgroup_id_x 1
  .amdhsa_float_denorm_mode_32 3
.end_amdhsa_kernel
'''
    open(path, 'w').write(s)
    return len(lines), nn

if __name__ == '__main__':
    ap = argparse.ArgumentParser()
    ap.add_argument('-o', default='k.s')
    ap.add_argument('--stop', type=int, default=99)
    ap.add_argument('--prof', action='store_true')
    ap.add_argument('--npre', type=int, default=2)
    ap.add_argument('--fine', type=int, default=0)
    ap.add_argument('--cyc', type=int, default=0)
    ap.add_argument('--map2d', type=int, default=1)
    ap.add_argument('--dbg', type=int, default=0)
    args = ap.parse_args()
    o.stop = args.stop; o.prof = args.prof; o.npre = args.npre; o.fine = args.fine; o.cyc = args.cyc; o.map2d = args.map2d; o.dbg = args.dbg
    n, nn = emit(args.o)
    print(f'{args.o}: {n} lines, {nn} inserted nops')
```

```python
from layout import *
import gen as G
from gen import cpf, vr, ar, stamp, set_exec, flag_store, poll_flags, WS, SA, SB, SC_, sW, sSG, sM, sN, sFL, vL, f2u, srd, newlab

import repack as RP
from gen import flags_issue, flags_check, pkb
vT16, vT16b, vA, vAV, vGS = 'v8', 'v9', 'v10', 'v11', 'v12'
vHA, vHAV, vHG = 'v13', 'v14', 'v15'
vSG_, vSD_, vSM_, vFP = 'v16', 'v17', 'v18', 'v19'
vWOF = 'v244'; vO1, vO2, vO3 = 'v245', 'v246', 'v247'
ACC = 20; XR = 84; DEPTH = 8; HB = 148; HH = 164; GS = 168; TMP = 200; HRAW = 208; HGS = 228
AHACC = 64; COLD = 144
def wf(i, t): return (88 if i % 2 == 0 else 218)+4*t
def hwf(u, n): return (120 if u % 2 == 0 else 176)+4*n
def acc(T, t): return ACC+(T*8+t)*4
def xr(i, T): return XR+((i % DEPTH)*2+T)*4
def hb(i, T): return HB+((i & 1)*2+T)*4
def gs(i): return GS+(i & 1)*16
sKC = ['s18', 's19', 's30', 's31']; sPITCH = 's32'; SMIX = 's[20:23]'
MCUR = [f's[{56+2*r}:{57+2*r}]' for r in range(4)]
MPRV = [f's[{64+2*r}:{65+2*r}]' for r in range(4)]
MG0, MG1 = 's[92:93]', 's[94:95]'

def waddr(t, i, halo=False):
    ib = i if halo else (i % 8)
    if t == 7: return (vHAV if halo else vAV), ib*7680+7168
    return (vHA if halo else vA), ib*7680+1024*t

def transform_ops(src, dst, g, tmp=TMP):
    mix = []
    for d in range(4):
        t0 = tmp+2*d; t1 = t0+1
        mix.append(f'v_fma_mix_f32 {vr(t0)}, {vr(src+d)}, {vr(g+2*d)}, {vr(g+8+2*d)} op_sel_hi:[1,0,0]')
        mix.append(f'v_fma_mix_f32 {vr(t1)}, {vr(src+d)}, {vr(g+2*d+1)}, {vr(g+8+2*d+1)} op_sel:[1,0,0] op_sel_hi:[1,0,0]')
    cv = [f'v_cvt_pk_bf16_f32 {vr(dst+d)}, {vr(tmp+2*d)}, {vr(tmp+2*d+1)}' for d in range(4)]
    return mix[0:4]+[cv[0]]+mix[4:6]+[cv[1]]+mix[6:8]+[cv[2], cv[3]]

def gs_reads(i, addr, dst):
    return [f'ds_read_b128 {vr(dst+r,4)}, {addr} offset:{128*i+o2}' for (o2, r) in ((0, 0), (16, 4), (2560, 8), (2576, 12))]

HT = [2, 3, 4, 5, 6, 7]
H0 = 10
C0 = 11

def cold_scalars(a):
    a(f's_mul_i32 s11, {sSG}, 5'); a(f's_add_u32 {sKC[0]}, s11, {sW}'); a(f's_mov_b32 {sKC[1]}, {sKC[0]}')
    a(f's_lshl_b32 s12, {sSG}, 1'); a(f's_lshr_b32 s13, {sM}, 3'); a('s_add_u32 s12, s12, s13'); a('s_mul_i32 s12, s12, 6')
    a(f's_add_u32 {sKC[3]}, s12, {sW}'); a(f's_add_u32 {sKC[3]}, {sKC[3]}, 2')
    a('s_add_u32 s11, s11, 4'); a(f's_add_u32 s12, s12, {sW}'); a('s_sub_u32 s12, s12, 2')
    a(f's_cmp_lt_u32 {sW}, 2'); a(f's_cselect_b32 {sKC[2]}, s11, s12')

def cold_setup(a):
    RP.srd_for(a, 44, G.P_WG, D*F*2); RP.srd_for(a, 48, G.P_WU, D*F*2); RP.srd_for(a, 52, G.P_WD, D*F*2)
    a(f's_cmp_eq_u32 {sW}, 0'); a(f's_cselect_b32 s20, s{G.P_WG}, s{G.P_WU}'); a(f's_cselect_b32 s21, s{G.P_WG+1}, s{G.P_WU+1}')
    a(f's_cmp_lt_u32 {sW}, 2'); a(f's_cselect_b32 s20, s20, s{G.P_WD}'); a(f's_cselect_b32 s21, s21, s{G.P_WD+1}')
    a(f's_mov_b32 s22, {D*F*2}'); a('s_mov_b32 s23, 0x20000')
    a(f's_movk_i32 {sPITCH}, 1280'); a(f's_cselect_b32 {sPITCH}, 3072, {sPITCH}')
    cold_scalars(a)
    RP.lane_maps(a, 'wg', vSG_, 'v4', 'v1', 'v2', 'v3')
    RP.lane_maps(a, 'wd', vSD_, 'v4', 'v1', 'v2', 'v3')
    a(f's_cmp_lt_u32 {sW}, 2'); a('s_cselect_b64 s[74:75], -1, 0'); a(f'v_cndmask_b32 {vSM_}, {vSD_}, {vSG_}, s[74:75]')

def attention_setup(a):
    a(f'v_and_b32 v2, 15, {vL}'); a(f'v_lshrrev_b32 v3, 4, {vL}')
    a('v_lshlrev_b32 v4, 2, v3'); a('v_sub_u32 v4, v2, v4')
    for r in range(4):
        a(f'v_subrev_u32 v5, {r}, v4')
        a('v_and_b32 v6, 0xfffffff1, v5'); a(f'v_cmp_eq_u32 {MCUR[r]}, 0, v6')
        a('v_add_u32 v5, 16, v5'); a('v_and_b32 v6, 0xfffffff1, v5'); a(f'v_cmp_eq_u32 {MPRV[r]}, 0, v6')
    a(f'v_cmp_eq_u32 {MG0}, 0, v3'); a(f'v_cmp_eq_u32 {MG1}, 1, v3')
    a('v_lshlrev_b32 v2, 4, v2')
    a('v_lshrrev_b32 v4, 1, v3'); a('v_lshl_add_u32 v4, v4, 8, v2'); a('v_and_b32 v5, 1, v3'); a(f'v_lshl_add_u32 {vO1}, v5, 3, v4')
    a('v_add_u32 v5, 5, v3'); a('v_lshrrev_b32 v6, 1, v5'); a('v_lshl_add_u32 v6, v6, 8, v2'); a('v_and_b32 v5, 1, v5'); a(f'v_lshl_add_u32 {vO2}, v5, 3, v6')
    a('v_mul_u32_u24 v7, 520, v3'); a('v_add_u32 v7, 512, v7'); a(f'v_add_u32 {vO3}, v7, v2')

def phase1(a, o):
    a.comment('================ phase 1')
    a.reset_counts()
    a(f'v_lshlrev_b32 {vT16}, 4, {vL}')
    a(f'v_add_u32 {vT16b}, {TILE_B}, {vT16}')
    a(f's_lshl_b32 s11, {sSG}, 3'); a(f's_lshl_b32 s12, {sW}, 1'); a('s_add_u32 s11, s11, s12')
    a(f's_mul_i32 s11, s11, {TILE_B}'); a(f's_add_u32 s78, s11, {XH_OFF}')
    xt = {}
    def xload(i):
        xt[(i, 0)] = a.vmem(f'buffer_load_dwordx4 {vr(xr(i,0),4)}, {vT16}, {WS}, s78 offen sc1')
        xt[(i, 1)] = a.vmem(f'buffer_load_dwordx4 {vr(xr(i,1),4)}, {vT16b}, {WS}, s78 offen sc1')
        a('s_add_u32 s78, s78, 1024')
    for i in range(2): xload(i)
    a(f'v_mov_b32 {vA}, {vT16}')
    a(f'v_lshrrev_b32 v1, 4, {vL}')
    a(f'v_and_b32 v2, 7, {vL}')
    a(f'v_lshlrev_b32 {vAV}, 7, v1'); a(f'v_lshl_add_u32 {vAV}, v2, 4, {vAV}')
    a(f'v_lshlrev_b32 {vGS}, 5, v1'); a(f'v_add_u32 {vGS}, {L_G1}, {vGS}')
    wt = {}; gt = {}
    def wread(t, i):
        v, off = waddr(t, i)
        wt[(t, i)] = a.lds(f'ds_read_b128 {ar(wf(i,t),4)}, {v} offset:{off}')
    for i in (0, 1):
        for op in gs_reads(i, vGS, gs(i)): gt[i] = a.lds(op)
    for t in range(8): wread(t, 0)
    xload(2); xload(3)
    a(f's_mul_i32 s11, {sW}, 38400')
    a(f'v_add_u32 {vHA}, s11, {vA}'); a(f'v_add_u32 {vHAV}, s11, {vAV}')
    a(f's_mul_i32 s11, {sW}, 640'); a(f'v_add_u32 {vHG}, s11, {vGS}')
    a(f's_lshl_b32 s11, {sSG}, 3'); a('s_sub_u32 s12, s11, 1'); a(f's_cmp_eq_u32 {sSG}, 0'); a('s_cselect_b32 s11, 0, s12')
    a(f's_mul_i32 s11, s11, {TILE_B}'); a(f's_mul_i32 s12, {sW}, 5120'); a('s_add_u32 s11, s11, s12'); a(f's_add_u32 s80, s11, {XH_OFF}')
    a(f's_mul_i32 s83, {sM}, 153600'); a(f's_add_u32 s83, s83, {WQ_OFF}'); a(f's_lshl_b32 s90, {sW}, 10'); a('s_add_u32 s83, s83, s90')
    xload(4); xload(5)
    cold_setup(a)
    xload(6); xload(7)
    attention_setup(a)
    a(f'v_bfe_u32 v1, {vL}, 1, 4'); a('v_lshlrev_b32 v1, 4, v1')
    a(f'v_and_b32 v2, 1, {vL}'); a('v_lshl_add_u32 v1, v2, 3, v1'); a(f's_and_b32 s11, {sM}, 7'); a('v_add_u32 v1, s11, v1')
    a('v_lshl_add_u32 v1, v1, 2, 1'); a('v_lshlrev_b32 v1, 7, v1'); a(f'v_add_u32 {vWOF}, {FLAG_OFF}, v1')
    a.wait_vm(xt[(0, 1)]); a.wait_lg(gt[0])
    for T in (0, 1):
        for op in transform_ops(xr(0, T), hb(0, T), gs(0)): a(op)
    xload(DEPTH)
    stamp(a, 5)
    dma_tok = {}
    def wq_dma(g, t):
        q4 = 4*t
        if t < 7:
            a(f's_add_u32 m0, s90, {g*30720+1024*q4}'); a(f's_add_u32 s91, s83, {g*30720+1024*q4}')
        else:
            a(f's_and_b32 s91, s90, 1024'); a(f's_add_u32 m0, s91, {g*30720+1024*28}')
            a('s_sub_u32 s91, s91, s90'); a('s_add_u32 s91, s91, s83'); a(f's_add_u32 s91, s91, {g*30720+1024*28}')
        dma_tok[g] = a.vmem(f'buffer_load_dwordx4 {vT16}, {WS}, s91 offen sc1 lds')
    bar = {3: [], 7: [2], 9: [3, 4], 15: []}
    hw = {}; hg = {}; ht = []
    st = dict(r=None, cold=None)
    for i in range(20):
        nxt = i+1 < 20
        u = i-H0
        hal = 0 <= u < 5
        if getattr(o, 'fine', 0) == 1 and i > 0: stamp(a, 30+i)
        if i in bar:
            for g in bar[i]: a.wait_vm(dma_tok[g])
            if i == 15: flags_check(a, st['r'], vWOF, vFP, 2)
            a('s_barrier')
            if i == 15:
                a(f's_and_b32 s11, {sM}, 7'); a('s_mul_i32 s84, s11, 102400'); a(f's_mul_i32 s85, {sW}, 25600'); a('s_add_u32 s84, s84, s85'); a(f's_add_u32 s84, s84, {WO_OFF}')
        mf = []
        for t in range(8): mf += [('m', t, 0), ('m', t, 1)]
        if hal: mf += [('h', n, 0) for n in range(6)]
        fill = []
        if hal: fill += ['XH']+transform_ops(HRAW+4*u, HH, HGS)
        if nxt: fill += ['X0']+transform_ops(xr(i+1, 0), hb(i+1, 0), gs(i+1))+transform_ops(xr(i+1, 1), hb(i+1, 1), gs(i+1))
        dsq = []
        if i+2 < 20: dsq += gs_reads(i+2, vGS, gs(i+2))
        hnext = H0 <= i+1 < H0+5
        vm = []
        if i < 8: vm += [lambda q=q: wq_dma(2+q//8, q % 8) for q in range(3*i, 3*i+3)]
        if i == 7:
            def hl():
                for uu in range(5):
                    if uu == 4: a('s_add_u32 s80, s80, 4096')
                    ht.append(a.vmem(f'buffer_load_dwordx4 {vr(HRAW+4*uu,4)}, {vT16}, {WS}, s80 offen offset:{1024*(uu % 4)} sc1'))
            vm.append(hl)
        if i >= 15:
            for t in range(5*(i-15), 5*(i-15)+5):
                def wo(t=t):
                    a(f's_add_u32 m0, s85, {1024*t}')
                    a.vmem(f'buffer_load_dwordx4 {vT16}, {WS}, s84 offen sc1 lds')
                    a('s_add_u32 s84, s84, 1024')
                vm.append(wo)
        if i == 17:
            from gen_p2 import phase2_prefetch
            vm.append(lambda: phase2_prefetch(a, o))
        if i == 1: vm.append(lambda: flag_store(a, 2))
        if i == 9: vm.append(lambda: cpf(a, 'L_attn'))
        if i == 16: vm.append(lambda: cpf(a, 'L_p2', -1024))
        if i == C0-1:
            def rl(): st['r'] = flags_issue(a, vWOF, vFP)
            vm.append(rl)
        if C0 <= i < C0+4:
            j = i-C0
            srd_, pitch, vs = [(SA, 3072, vSG_), (SB, 3072, vSG_), (SMIX, sPITCH, vSM_), (SC_, 1280, vSD_)][j]
            def cl(srd_=srd_, pitch=pitch, vs=vs, j=j):
                st['cold'] = RP.unit_loads(a, srd_, sKC[j], pitch, vs, COLD+8*j, areg=True, stmp='s86')
            vm.append(cl)
        nslots = len(mf)
        nfill = len([f for f in fill if not f.startswith('X')])
        fi = 0; done = 0
        step = max(1, (nslots-2)//max(1, len(vm)))
        vslots = [min(2+step*k, nslots-1) for k in range(len(vm))]
        for k, (kind, t, T) in enumerate(mf):
            if kind == 'm':
                if T == 0: a.wait_lg(wt[(t, i)])
                c = '0' if i == 0 else vr(acc(T, t), 4)
                if t < 5: a(f'v_mfma_f32_16x16x32_bf16 {vr(acc(T,t),4)}, {ar(wf(i,t),4)}, {vr(hb(i,T),4)}, {c}')
                else:     a(f'v_mfma_f32_16x16x32_bf16 {vr(acc(T,t),4)}, {vr(hb(i,T),4)}, {ar(wf(i,t),4)}, {c}')
                if nxt:
                    if k == 0 and (i+1) % 8 == 0:
                        for v in (vA, vAV): a(f'v_add_u32 {v}, 61440, {v}')
                    if T == 1: wread(t, i+1)
            else:
                tt = HT[t]
                a.wait_lg(hw[(t, u)])
                c = '0' if u == 0 else ar(AHACC+4*t, 4)
                if tt < 5: a(f'v_mfma_f32_16x16x32_bf16 {ar(AHACC+4*t,4)}, {ar(hwf(u,t),4)}, {vr(HH,4)}, {c}')
                else:      a(f'v_mfma_f32_16x16x32_bf16 {ar(AHACC+4*t,4)}, {vr(HH,4)}, {ar(hwf(u,t),4)}, {c}')
                if u+1 < 5:
                    v, off = waddr(tt, u+1, halo=True)
                    hw[(t, u+1)] = a.lds(f'ds_read_b128 {ar(hwf(u+1,t),4)}, {v} offset:{off}')
            if dsq and k % 2 == 0 and k < 8:
                gt[i+2] = a.lds(dsq.pop(0))
            lastk = nslots-1
            want = min(nfill, ((k+1)*nfill+lastk)//(lastk+1)) if k < lastk else nfill
            while done < want and fi < len(fill):
                f = fill[fi]; fi += 1
                if f == 'X0': a.wait_vm(xt[(i+1, 1)]); a.wait_lg(gt[i+1])
                elif f == 'XH': a.wait_vm(ht[u]); a.wait_lg(hg[u])
                else: a(f); done += 1
            for vi, vs_ in enumerate(vslots):
                if vs_ == k: vm[vi]()
        if hnext:
            un = i+1-H0
            for op in gs_reads(un, vHG, HGS): hg[un] = a.lds(op)
            if un == 0:
                for n in range(6):
                    v, off = waddr(HT[n], 0, halo=True)
                    hw[(n, 0)] = a.lds(f'ds_read_b128 {ar(hwf(0,n),4)}, {v} offset:{off}')
        if i+1+DEPTH < 20: xload(i+1+DEPTH)
    stamp(a, 6)
    attention(a, o, st)

def cold_finish(a, o):
    a(f's_mul_i32 s11, {sM}, 245760'); a(f's_add_u32 s11, s11, {WGU_OFF}')
    a(f'v_lshrrev_b32 v1, 5, {vL}'); a('v_mul_u32_u24 v1, 81920, v1'); a(f'v_and_b32 v2, 31, {vL}'); a('v_lshl_add_u32 v10, v2, 4, v1'); a('v_add_u32 v10, s11, v10')
    a(f'v_lshlrev_b32 v11, 4, {vL}'); a(f'v_add_u32 v11, {2*81920}, v11'); a('v_add_u32 v11, s11, v11')
    a(f's_and_b32 s12, {sM}, 7'); a('s_mul_i32 s12, s12, 245760'); a(f's_add_u32 s12, s12, {WD_OFF}')
    a(f'v_lshrrev_b32 v1, 4, {vL}'); a('v_lshlrev_b32 v1, 10, v1'); a(f'v_and_b32 v2, 15, {vL}'); a('v_lshl_add_u32 v12, v2, 4, v1'); a('v_add_u32 v12, s12, v12')
    a(f'v_lshlrev_b32 v13, 4, {vL}'); a('v_add_u32 v13, 4096, v13'); a('v_add_u32 v13, s12, v13')
    a('v_mov_b32 v3, 0x40000000')
    a(f'v_cmp_gt_u32 vcc, 32, {vL}'); a('v_cndmask_b32 v11, v3, v11, vcc')
    a(f'v_cmp_gt_u32 vcc, 16, {vL}'); a('v_cndmask_b32 v13, v3, v13, vcc')
    a(f's_cmp_eq_u32 {sW}, 1'); a('s_cselect_b32 s13, 1024, 0'); a('v_add_u32 v14, s13, v10'); a('v_add_u32 v15, s13, v11')
    a(f's_cmp_lt_u32 {sW}, 2'); a('s_cselect_b64 s[74:75], -1, 0'); a('v_cndmask_b32 v14, v12, v14, s[74:75]'); a('v_cndmask_b32 v15, v13, v15, s[74:75]')
    a(f's_mul_i32 s13, {sW}, 5120'); a(f's_add_u32 s13, s13, {L_BNC}')
    a(f'v_lshl_add_u32 v4, {vL}, 5, s13'); a(f'v_lshl_add_u32 v5, {vL}, 4, s13')
    R = 84; O = 116
    dest = [('v10', 'v11', 0), ('v10', 'v11', 1024), ('v14', 'v15', 0), ('v12', 'v13', 0)]
    last = None
    for rnd in range(2):
        for j in (2*rnd, 2*rnd+1):
            for e in range(8): a(f'v_accvgpr_read_b32 {vr(R+8*j+e)}, {ar(COLD+8*j+e)}')
            for d in range(4):
                a(f'v_perm_b32 {vr(O+8*j+d)}, {vr(R+8*j+2*d+1)}, {vr(R+8*j+2*d)}, {RP.SEL_LO}')
                a(f'v_perm_b32 {vr(O+8*j+4+d)}, {vr(R+8*j+2*d+1)}, {vr(R+8*j+2*d)}, {RP.SEL_HI}')
            a.lds(f'ds_write_b128 v4, {vr(O+8*j,4)} offset:{2048*(j & 1)}')
            a.lds(f'ds_write_b128 v4, {vr(O+8*j+4,4)} offset:{2048*(j & 1)+16}')
        tk = {}
        for j in (2*rnd, 2*rnd+1):
            a.lds(f'ds_read_b128 {vr(R+8*j,4)}, v5 offset:{2048*(j & 1)}')
            tk[j] = a.lds(f'ds_read_b128 {vr(R+8*j+4,4)}, v5 offset:{2048*(j & 1)+1024}')
        for j in (2*rnd, 2*rnd+1):
            if j < 2: RP.unit_dest_scalar(a, 'wg', sKC[j], 's86', 's87')
            elif j == 2:
                RP.unit_dest_scalar(a, 'wg', sKC[2], 's86', 's87'); RP.unit_dest_scalar(a, 'wd', sKC[2], 's88', 's87')
                a(f's_cmp_lt_u32 {sW}, 2'); a('s_cselect_b32 s86, s86, s88')
            else: RP.unit_dest_scalar(a, 'wd', sKC[3], 's86', 's87')
            a.wait_lg(tk[j])
            va, vb, off = dest[j]
            a.vmem(f'buffer_store_dwordx4 {vr(R+8*j,4)}, {va}, {WS}, s86 offen offset:{off} sc1')
            last = a.vmem(f'buffer_store_dwordx4 {vr(R+8*j+4,4)}, {vb}, {WS}, s86 offen offset:{off} sc1')
    return last

L_EX = 102400
L_HP = 114688

def cross_op(a, op, v, t0, t1):
    for sw in ('v_permlane16_swap_b32', 'v_permlane32_swap_b32'):
        a(f'v_mov_b32 {t0}, {v}'); a(f'v_mov_b32 {t1}, {v}')
        a(f'{sw} {t0}, {t1}')
        a(f'{op} {v}, {t0}, {t1}')

def attention(a, o, st):
    a.label('L_attn')
    Q = 84; K = 100; V = 124; SS = 148; PF = 180; OO = 196; ONE = 212; NEG = 216; CZ = 224; MX = 220
    t0, t1 = 'v217', 'v218'
    def q(T, h): return Q+(T*2+h)*4
    def kf(U, h): return K+(U*2+h)*4
    def vf(T, x): return V+(T*3+x)*4
    def ss(T, h): return SS+(T*2+h)*8
    def pf(T, h): return PF+(T*2+h)*4
    def pk(dst, src):
        a(f'v_cvt_pk_bf16_f32 {vr(dst)}, {vr(src)}, {vr(src+1)}')
        a(f'v_cvt_pk_bf16_f32 {vr(dst+1)}, {vr(src+2)}, {vr(src+3)}')
    def kpack(U, ka, kb, c):
        pk(kf(U, 0), ka); pk(kf(U, 1), kb)
        for d in (0, 1):
            a(f'v_cvt_pk_bf16_f32 {t0}, {vr(c+2*d)}, {vr(c+2*d+1)}')
            a(f'v_mov_b32 {vr(kf(U,0)+2+d)}, {t0}')
            a(f'v_permlane32_swap_b32 {t0}, {vr(kf(U,0)+2+d)}')
            a(f'v_mov_b32 {vr(kf(U,1)+2+d)}, {vr(kf(U,0)+2+d)}')
    def qpack(T):
        pk(q(T, 0), acc(T, 0)); pk(q(T, 1), acc(T, 1))
        for d in (0, 1):
            a(f'v_cvt_pk_bf16_f32 {t0}, {vr(acc(T,4)+2*d)}, {vr(acc(T,4)+2*d+1)}')
            a(f'v_cndmask_b32 {vr(q(T,0)+2+d)}, 0, {t0}, {MG0}')
            a(f'v_cndmask_b32 {vr(q(T,1)+2+d)}, 0, {t0}, {MG1}')
    a(f'v_mov_b32 v{NEG}, 0xf149f2ca')
    for r in range(4): a(f'v_mov_b32 {vr(ONE+r)}, 0x3f803f80')
    a(f's_or_b32 s11, {sSG}, {sW}'); a('s_cmp_eq_u32 s11, 0'); a('s_cselect_b32 s11, 0xf149f2ca, 0')
    for r in range(4): a(f'v_mov_b32 {vr(CZ+r)}, s11')
    a(f's_mul_i32 s11, {sW}, 6144'); a(f's_add_u32 s11, s11, {L_HP}'); a(f'v_add_u32 v1, s11, {vT16}')
    a(f's_mul_i32 s11, {sW}, 3584'); a(f's_add_u32 s11, s11, {L_EX}'); a(f'v_add_u32 v2, s11, {vT16}')
    a(f'v_lshlrev_b32 v5, 3, {vL}'); a('v_add_u32 v5, s11, v5')
    a(f's_lshl_b32 s11, {sSG}, 3'); a(f's_lshl_b32 s12, {sW}, 1'); a('s_add_u32 s11, s11, s12')
    a(f's_mul_i32 s11, s11, {TILE_B}'); a(f's_mul_i32 s12, {sM}, 1280'); a('s_add_u32 s11, s11, s12')
    a(f's_add_u32 s76, s11, {O_OFF}'); a(f's_add_u32 s77, s76, {TILE_B}')
    a(f's_mov_b32 s79, {hex(f2u((DH**-0.5)*1.4426950408889634))}')
    stamp(a, 7)
    a('s_barrier')
    def wo_piece(n=1): pass
    for n in range(6): a.lds(f'ds_write_b128 v1, {ar(AHACC+4*n,4)} offset:{1024*n}')
    kpack(2, acc(1, 2), acc(1, 3), acc(1, 4))
    for x in range(3): pk(vf(1, x)+2, acc(1, 5+x))
    wo_piece()
    Lskip = newlab('noex')
    a(f's_cmp_eq_u32 {sW}, 3'); a(f's_cbranch_scc1 {Lskip}')
    a(f'ds_write_b128 v2, {vr(kf(2,0),4)}')
    a(f'ds_write_b128 v2, {vr(kf(2,1),4)} offset:1024')
    for x in range(3): a(f'ds_write_b64 v5, {vr(vf(1,x)+2,2)} offset:{2048+512*x}')
    a.label(Lskip)
    kpack(1, acc(0, 2), acc(0, 3), acc(0, 4))
    wo_piece()
    qpack(1)
    def s_mfma(T):
        for h in (0, 1):
            a(f'v_mfma_f32_16x16x32_bf16 {vr(ss(T,h),4)}, {vr(kf(T,h),4)}, {vr(q(T,h),4)}, {vr(CZ,4) if T == 0 else "0"}')
            a(f'v_mfma_f32_16x16x32_bf16 {vr(ss(T,h)+4,4)}, {vr(kf(T+1,h),4)}, {vr(q(T,h),4)}, 0')
    s_mfma(1)
    for x in range(3): pk(vf(0, x)+2, acc(0, 5+x)); pk(vf(1, x), acc(0, 5+x))
    wo_piece()
    qpack(0)
    wo_piece()
    def softmax(T):
        for h in (0, 1):
            for r in range(4):
                a(f'v_cndmask_b32 {vr(ss(T,h)+r)}, v{NEG}, {vr(ss(T,h)+r)}, {MPRV[r]}')
                a(f'v_cndmask_b32 {vr(ss(T,h)+4+r)}, v{NEG}, {vr(ss(T,h)+4+r)}, {MCUR[r]}')
        for h in (0, 1):
            b = ss(T, h); m = vr(MX+h)
            a(f'v_max3_f32 {m}, {vr(b)}, {vr(b+1)}, {vr(b+2)}')
        for h in (0, 1):
            b = ss(T, h); m = vr(MX+h); a(f'v_max3_f32 {m}, {m}, {vr(b+3)}, {vr(b+4)}')
        for h in (0, 1):
            b = ss(T, h); m = vr(MX+h); a(f'v_max3_f32 {m}, {m}, {vr(b+5)}, {vr(b+6)}')
        for h in (0, 1):
            b = ss(T, h); m = vr(MX+h); a(f'v_max_f32 {m}, {m}, {vr(b+7)}')
        wo_piece()
        for sw in ('v_permlane16_swap_b32', 'v_permlane32_swap_b32'):
            for h in (0, 1):
                a(f'v_mov_b32 {vr(OO+2*h)}, {vr(MX+h)}'); a(f'v_mov_b32 {vr(OO+2*h+1)}, {vr(MX+h)}')
            for h in (0, 1): a(f'{sw} {vr(OO+2*h)}, {vr(OO+2*h+1)}')
            for h in (0, 1): a(f'v_max_f32 {vr(MX+h)}, {vr(OO+2*h)}, {vr(OO+2*h+1)}')
        for h in (0, 1): a(f'v_mul_f32 {vr(MX+h)}, s79, {vr(MX+h)}')
        for h in (0, 1):
            b = ss(T, h)
            for r in range(8): a(f'v_fma_f32 {vr(b+r)}, {vr(b+r)}, s79, -{vr(MX+h)}')
        wo_piece()
        for h in (0, 1):
            b = ss(T, h)
            for r in range(8): a(f'v_exp_f32 {vr(b+r)}, {vr(b+r)}')
        for h in (0, 1):
            b = ss(T, h)
            for d in range(4): a(f'v_cvt_pk_bf16_f32 {vr(pf(T,h)+d)}, {vr(b+2*d)}, {vr(b+2*d+1)}')
    OB = {1: 20, 0: 44}
    def pv_mfma(T):
        b = OB[T]
        a(f'v_mfma_f32_16x16x32_bf16 {vr(b,4)}, {vr(ONE,4)}, {vr(pf(T,0),4)}, 0')
        a(f'v_mfma_f32_16x16x32_bf16 {vr(b+4,4)}, {vr(ONE,4)}, {vr(pf(T,1),4)}, 0')
        a(f'v_mfma_f32_16x16x32_bf16 {vr(b+8,4)}, {vr(vf(T,0),4)}, {vr(pf(T,0),4)}, 0')
        a(f'v_mfma_f32_16x16x32_bf16 {vr(b+12,4)}, {vr(vf(T,1),4)}, {vr(pf(T,1),4)}, 0')
        a(f'v_mfma_f32_16x16x32_bf16 {vr(b+16,4)}, {vr(vf(T,2),4)}, {vr(pf(T,0),4)}, 0')
        a(f'v_mfma_f32_16x16x32_bf16 {vr(b+20,4)}, {vr(vf(T,2),4)}, {vr(pf(T,1),4)}, 0')
    def finish(T):
        b = OB[T]; so = 's77' if T == 1 else 's76'
        a(f'v_rcp_f32 {vr(b)}, {vr(b)}'); a(f'v_rcp_f32 {vr(b+4)}, {vr(b+4)}')
        for r in range(4): a(f'v_cndmask_b32 {vr(b+16+r)}, {vr(b+20+r)}, {vr(b+16+r)}, {MG0}')
        a(f'v_cndmask_b32 {vr(b+2)}, {vr(b+4)}, {vr(b)}, {MG0}')
        for h in (0, 2):
            a(pkb('mul', b+8+h, b+8+h, ('b', b))); a(pkb('mul', b+12+h, b+12+h, ('b', b+4))); a(pkb('mul', b+16+h, b+16+h, ('b', b+2)))
        pk(b+8, b+8); pk(b+12, b+12); pk(b+16, b+16)
        a.vmem(f'buffer_store_dwordx2 {vr(b+8,2)}, {vO1}, {WS}, {so} offen sc1')
        a.vmem(f'buffer_store_dwordx2 {vr(b+12,2)}, {vO2}, {WS}, {so} offen sc1')
        a('s_mov_b32 exec_hi, 0')
        t = a.vmem(f'buffer_store_dwordx2 {vr(b+16,2)}, {vO3}, {WS}, {so} offen sc1')
        a('s_mov_b32 exec_hi, -1')
        return t
    softmax(1)
    a.wait_all_lg()
    a('s_barrier')
    stamp(a, 8)
    Lw0 = newlab('w0'); Lj = newlab('prevj')
    a(f's_cmp_eq_u32 {sW}, 0'); a(f's_cbranch_scc1 {Lw0}')
    a('v_subrev_u32 v2, 3584, v2'); a('v_subrev_u32 v5, 3584, v5')
    a(f'ds_read_b128 {vr(kf(0,0),4)}, v2')
    a(f'ds_read_b128 {vr(kf(0,1),4)}, v2 offset:1024')
    for x in range(3): a(f'ds_read_b64 {vr(vf(0,x),2)}, v5 offset:{2048+512*x}')
    pv_mfma(1)
    a('s_nop 7')
    a(f's_branch {Lj}')
    a.label(Lw0)
    a(f'v_add_u32 v1, {L_HP}, {vT16}')
    R = 148+16
    HA = 228
    def hdst(n): return (228+4*n) if n < 4 else (196+4*(n-4))
    for n in range(6): a(f'ds_read_b128 {vr(hdst(n),4)}, v1 offset:{1024*n}')
    pv_mfma(1)
    for w in range(1, 4):
        for n in range(6): a(f'ds_read_b128 {vr(148+4*n,4)}, v1 offset:{6144*w+1024*n}')
        a('s_waitcnt lgkmcnt(0)')
        for n in range(6):
            for h in (0, 2): a(pkb('add', hdst(n)+h, hdst(n)+h, 148+4*n+h))
    kpack(0, hdst(0), hdst(1), hdst(2))
    for x in range(3): pk(vf(0, x), hdst(3+x))
    a.label(Lj)
    finish(1)
    a('s_waitcnt lgkmcnt(0)'); a.lg = []
    s_mfma(0)
    wo_piece(2)
    softmax(0)
    pv_mfma(0)
    wo_piece(2)
    last = finish(0)
    stamp(a, 9)
    cold_finish(a, o)
    from gen_p2 import phase2_setup
    wo_piece(3)
    phase2_setup(a, o)
    a.wait_vm(last)
    flag_store(a, 3)
    stamp(a, 10)
    wo_piece(25)
```

```python
from layout import *
import gen as G
from gen import flags_issue, flags_check, pkb, vr, ar, stamp, set_exec, flag_store, poll_flags, WS, SA, SB, SC_, sW, sSG, sM, sN, sFL, vL, f2u, srd, newlab
from gen_p3 import wd_addr, wd_group, Dma, vT16, st4
from gen_p2 import X1A

def phase4(a, o):
    a.comment('================ phase 4')
    a.label('L_p4')
    at = st4.at; act_load = st4.act_load
    sCB = 's80'
    dd = Dma(a, 's89')
    ACC = 32; WB = 64
    def laddr(byte):
        b = byte//65536
        return [vT16, 'v16', 'v17'][b], byte-65536*b
    seq = [(s, nt) for s in range(48) for nt in range(5)]
    wt = {}
    def rd(idx):
        s, nt = seq[idx]; v, off = laddr(wd_addr(s, nt))
        wt[idx] = a.lds(f'ds_read_b128 {vr(WB+4*(idx%10),4)}, {v} offset:{off}')
    LA = 9
    tok = st4.tok
    for idx in range(LA): rd(idx)
    a(f'v_lshrrev_b32 v3, 4, {vL}'); a('v_lshlrev_b32 v4, 4, v3'); a(f'v_add_u32 v4, {L_VEC+640}, v4')
    GB = 112; XF = 136; PK = 160
    for nt in range(5): tg = a.lds(f'ds_read_b128 {vr(GB+4*nt,4)}, v4 offset:{64*nt}')
    a('s_mov_b32 s11, 0xffff0000')
    for i in range(10):
        a(f'v_accvgpr_read_b32 v1, {ar(X1A+i)}'); a(f'v_lshlrev_b32 {vr(XF+2*i)}, 16, v1'); a(f'v_and_b32 {vr(XF+2*i+1)}, s11, v1')
    srd(a, 44, G.P_OUT, S*D*2)
    a(f'v_and_b32 v2, 15, {vL}')
    a('v_and_b32 v7, 1, v3'); a('v_lshlrev_b32 v7, 1, v7'); a('v_lshrrev_b32 v6, 1, v3'); a('v_add_u32 v7, v7, v6')
    a('v_lshlrev_b32 v7, 4, v7'); a('v_mul_u32_u24 v6, 1280, v2'); a('v_add_u32 v7, v7, v6')
    a(f's_and_b32 {sCB}, {sM}, 7')
    a(f's_lshl_b32 s81, s87, 4'); a('s_mul_i32 s81, s81, 1280'); a(f's_mul_i32 s12, {sCB}, 160'); a('s_add_u32 s81, s81, s12')
    stamp(a, 22)
    def tag(key, f):
        def g(): tok[key] = f()
        return g
    vq = []
    vq += [(1, lambda i=i: act_load(i)) for i in range(16, 24)]
    vq += [(8, tag('d4', lambda g=g: wd_group(dd, g))) for g in range(38, 41)]
    vq += [(8, lambda i=i: act_load(i)) for i in range(24, 32)]
    vq += [(8, tag('d4', lambda g=g: wd_group(dd, g))) for g in range(41, 48)]
    vq += [(20, lambda i=i: act_load(i)) for i in range(32, 40)]
    vq += [(20, tag('d5', lambda g=g: wd_group(dd, g))) for g in range(48, 54)]
    vq += [(20, lambda i=i: act_load(i)) for i in range(40, 48)]
    vq += [(20, tag('d5', lambda g=g: wd_group(dd, g))) for g in range(54, 60)]
    vi = 0
    for idx, (s, nt) in enumerate(seq):
        if getattr(o, 'fine', 0) == 3 and nt == 0 and s % 4 == 0: stamp(a, 44+s//4)
        if nt == 0 and s == 1: flags_check(a, tok['f8'], 'v31', 'v5', 8)
        if nt == 0 and s == 8:
            a.wait_vm(tok['d2']); a('s_barrier')
        if nt == 0 and s == 14: tok['f9'] = flags_issue(a, 'v31', 'v5')
        if nt == 0 and s == 18:
            a.wait_vm(tok['d3']); a('s_barrier')
        if nt == 0 and s == 20: flags_check(a, tok['f9'], 'v31', 'v5', 9)
        nidx = idx+LA
        if nidx < len(seq):
            ns, nn = seq[nidx]; q = 5*ns+nn
            if q == 4*38:
                a.wait_vm(tok['d4']); a('s_barrier')
            if q == 4*48:
                assert vi >= len(vq)-6
                a.wait_vm(tok['d5']); a('s_barrier')
            if q == 4*54:
                assert vi == len(vq)
                a.wait_vm(tok['d5']); a('s_barrier')
        if nt == 0: a.wait_vm(at[s])
        a.wait_lg(wt[idx])
        a(f'v_mfma_f32_16x16x32_bf16 {vr(ACC+4*nt,4)}, {vr(WB+4*(idx%10),4)}, {ar(4*s,4)}, {"0" if s == 0 else vr(ACC+4*nt,4)}')
        if nidx < len(seq): rd(nidx)
        if vi < len(vq) and s >= vq[vi][0] and (nt == 1 or (nt == 3 and s >= 8)):
            vq[vi][1](); vi += 1
    stamp(a, 23)
    for i in range(10): a(pkb('fma', XF+2*i, GB+2*i, ACC+2*i, XF+2*i))
    for i in range(10): a(f'v_cvt_pk_bf16_f32 {vr(PK+i)}, {vr(XF+2*i)}, {vr(XF+2*i+1)}')
    a(f'v_mov_b32 {vr(PK+10)}, {vr(PK+8)}'); a(f'v_mov_b32 {vr(PK+11)}, {vr(PK+9)}')
    for p in range(3):
        for d in (0, 1): a(f'v_permlane16_swap_b32 {vr(PK+4*p+d)}, {vr(PK+4*p+2+d)}')
    fl = {0: '', 1: ' sc1', 2: ' nt', 3: ' sc0 sc1'}[getattr(o, 'outst', 0)]
    a.vmem(f'buffer_store_dwordx4 {vr(PK,4)}, v7, {SA}, s81 offen{fl}')
    a.vmem(f'buffer_store_dwordx4 {vr(PK+4,4)}, v7, {SA}, s81 offen offset:64{fl}')
    set_exec(a, 0x0000ffff0000ffff)
    a.vmem(f'buffer_store_dwordx4 {vr(PK+8,4)}, v7, {SA}, s81 offen offset:128{fl}')
    set_exec(a, (1 << 64)-1)
    stamp(a, 24)
    Lz = newlab('noz'); L = newlab('zs'); Ld = newlab('zd')
    a(f's_xor_b32 s11, {sW}, 3'); a('s_or_b32 s11, s11, s9'); a('s_cmp_lg_u32 s11, 0'); a(f's_cbranch_scc1 {Lz}')
    a(f'v_lshlrev_b32 v5, 2, {vL}'); a('v_add_u32 v5, 3, v5'); a('v_lshlrev_b32 v5, 7, v5'); a(f'v_add_u32 v5, {FLAG_OFF}, v5')
    a(f's_mov_b32 s73, {o.spin}'); a(f's_add_u32 s72, {sN}, 1')
    a.label(L)
    for q in range(4):
        a(f's_mov_b32 s11, {256*128*q}')
        a(f'buffer_load_dword {vr(12+q)}, v5, {WS}, s11 offen sc1')
    a('s_waitcnt vmcnt(0)')
    for q in range(4): a(f'v_subrev_u32 {vr(12+q)}, s72, {vr(12+q)}')
    a('v_max_u32 v12, v12, v13'); a('v_max3_u32 v12, v12, v14, v15')
    a('v_cmp_lt_u32 vcc, 14, v12')
    a('s_sub_u32 s73, s73, 1'); a('s_cmp_eq_u32 s73, 0'); a(f's_cbranch_scc1 {Ld}'); a(f's_cbranch_vccnz {L}')
    a.label(Ld)
    a(f'v_mov_b32 v1, {sN}'); set_exec(a, 1)
    a.vmem(f'buffer_store_dword v1, off, {WS}, 0 sc1', optional=True)
    set_exec(a, (1 << 64)-1)
    a.label(Lz)
```

```python
import sys, argparse
if __name__ == '__main__': sys.modules['gen'] = sys.modules['__main__']
from asmcore import Asm, hazard_pass
from layout import *

KNAME = 'adaLN_cond__sliding_local_dilated__geglu_ffn__prompt_kernel'

class Opt:
    stop = 99
    prof = False
    npre = 2
    spin = 200000
o = Opt()

sW, sSG, sM, sXCD, sJ, sN, sROT, sFL = 's3', 's4', 's5', 's6', 's7', 's8', 's9', 's10'
sX = 's9'
P_X, P_WQKV, P_WO, P_BX, P_WG, P_WU, P_WD, P_C, P_WMOD, P_OUT, P_DBG, P_WS = [16+2*i for i in range(12)]
WS = 's[40:43]'; SA = 's[44:47]'; SB = 's[48:51]'; SC_ = 's[52:55]'
vL = 'v0'
vPROF = 'v255'

def srd(a, base, ptr, size):
    a(f's_mov_b32 s{base}, s{ptr}')
    a(f's_mov_b32 s{base+1}, s{ptr+1}')
    a(f's_mov_b32 s{base+2}, {size}')
    a(f's_mov_b32 s{base+3}, 0x20000')

def set_exec(a, mask):
    lo, hi = mask & 0xffffffff, mask >> 32
    if mask == (1 << 64)-1: a('s_mov_b64 exec, -1'); return
    a(f's_mov_b32 exec_lo, {hex(lo)}'); a(f's_mov_b32 exec_hi, {hex(hi)}')

def vr(b, n=1): return f'v{b}' if n == 1 else f'v[{b}:{b+n-1}]'
def ar(b, n=1): return f'a{b}' if n == 1 else f'a[{b}:{b+n-1}]'

_lab = [0]
def newlab(p):
    _lab[0] += 1; return f'L_{p}_{_lab[0]}'

def stamp(a, idx):
    if not o.prof: return
    if getattr(o, 'cyc', 0) == 2:
        a('s_memrealtime s[100:101]'); a('s_memtime s[72:73]')
        a('s_waitcnt lgkmcnt(0)'); a.lg = []
        a(f'v_writelane_b32 {vPROF}, s100, {idx}')
        if idx < 29: a(f'v_writelane_b32 {vPROF}, s72, {idx+32}')
        return
    a('s_memtime s[100:101]' if getattr(o, 'cyc', 0) else 's_memrealtime s[100:101]')
    a('s_waitcnt lgkmcnt(0)'); a.lg = []
    a(f'v_writelane_b32 {vPROF}, s100, {idx}')

def fstamp(a, idx):
    if getattr(o, 'fine', 0) == 2: stamp(a, idx)

def flag_store(a, phase):
    a(f's_add_u32 s72, {sN}, {phase}')
    a('v_mov_b32 v1, s72')
    a('s_mov_b64 exec, 1')
    a.vmem(f'buffer_store_dword v1, off, {WS}, {sFL} sc1', optional=True)
    a('s_mov_b64 exec, -1')

def poll_flags(a, vaddr, nlanes, phase, vtmp):
    L = newlab('poll'); Ld = newlab('polld')
    mask = (1 << nlanes)-1
    set_exec(a, mask)
    a(f's_add_u32 s72, {sN}, {phase}')
    a(f's_mov_b32 s73, {o.spin}')
    a.label(L)
    a(f'buffer_load_dword {vtmp}, {vaddr}, {WS}, 0 offen sc1')
    a('s_waitcnt vmcnt(0)'); a.vm = []
    a(f'v_subrev_u32 {vtmp}, s72, {vtmp}')
    a(f'v_cmp_lt_u32 vcc, {15-phase}, {vtmp}')
    a('s_sub_u32 s73, s73, 1')
    a('s_cmp_eq_u32 s73, 0')
    a(f's_cbranch_scc1 {Ld}')
    a(f's_cbranch_vccnz {L}')
    a.label(Ld)
    a('s_mov_b64 exec, -1')

SLOW = []
def flags_issue(a, vaddr, vdst, nlanes=64):
    return a.vmem(f'buffer_load_dword {vdst}, {vaddr}, {WS}, 0 offen sc1')

def flags_check(a, tok, vaddr, vdst, phase):
    a.wait_vm(tok)
    Ls = newlab('slow'); Lb = newlab('back')
    a(f's_add_u32 s72, {sN}, {phase}')
    a(f'v_subrev_u32 {vdst}, s72, {vdst}')
    a(f'v_cmp_lt_u32 vcc, {15-phase}, {vdst}')
    a(f's_cbranch_vccnz {Ls}')
    a.label(Lb)
    SLOW.append((Ls, Lb, vaddr, vdst, phase))

def emit_slow(a):
    for Ls, Lb, vaddr, vdst, phase in SLOW:
        L = newlab('spin')
        a.label(Ls)
        a(f's_mov_b32 s73, {o.spin}')
        a.label(L)
        a(f'buffer_load_dword {vdst}, {vaddr}, {WS}, 0 offen sc1')
        a('s_waitcnt vmcnt(0)')
        a(f'v_subrev_u32 {vdst}, s72, {vdst}')
        a(f'v_cmp_lt_u32 vcc, {15-phase}, {vdst}')
        a('s_sub_u32 s73, s73, 1'); a('s_cmp_eq_u32 s73, 0'); a(f's_cbranch_scc1 {Lb}')
        a(f's_cbranch_vccnz {L}')
        a(f's_branch {Lb}')

def prologue(a):
    a('s_cmp_ge_u32 s2, 256')
    a('s_cbranch_scc1 L_exit')
    a('s_load_dwordx16 s[16:31], s[0:1], 0')
    a('s_load_dwordx8 s[32:39], s[0:1], 64')
    a('s_getpc_b64 s[14:15]')
    a.label('L_pc')
    a('s_lshr_b32 s11, s2, 3'); a('s_and_b32 s11, s11, 7'); a('s_lshl_b32 s11, s11, 13')
    a('v_lshrrev_b32 v3, 6, v0'); a('v_lshlrev_b32 v3, 4, v3'); a('v_and_b32 v2, 15, v0'); a('v_add_u32 v3, v3, v2')
    a('v_lshl_add_u32 v3, v3, 7, s11')
    a('v_min_u32 v3, (L_code_end-L_pc-4), v3')
    a('global_load_dword v254, v3, s[14:15]')
    a('v_lshrrev_b32 v1, 6, v0')
    a('v_and_b32 v0, 63, v0')
    a(f'v_readfirstlane_b32 {sW}, v1')
    a('v_and_b32 v252, 15, v0'); a('v_lshl_add_u32 v252, v1, 4, v252'); a('v_lshlrev_b32 v252, 7, v252')
    a(f's_and_b32 {sXCD}, s2, 7')
    a(f's_lshr_b32 {sJ}, s2, 3')
    if getattr(o, 'map2d', 1):
        a(f's_lshr_b32 {sSG}, {sXCD}, 1'); a(f's_lshl_b32 {sSG}, {sSG}, 2'); a(f's_lshr_b32 s11, {sJ}, 3'); a(f's_add_u32 {sSG}, {sSG}, s11')
        a(f's_and_b32 {sM}, {sJ}, 3'); a(f's_and_b32 s11, {sXCD}, 1'); a('s_lshl_b32 s11, s11, 2'); a(f's_add_u32 {sM}, {sM}, s11')
        a(f's_and_b32 s11, {sJ}, 4'); a('s_lshl_b32 s11, s11, 1'); a(f's_add_u32 {sM}, {sM}, s11')
    else:
        a(f's_and_b32 {sM}, {sJ}, 15')
        a(f's_lshr_b32 s11, {sJ}, 4')
        a(f's_lshl_b32 {sSG}, {sXCD}, 1')
        a(f's_add_u32 {sSG}, {sSG}, s11')
    a(f's_lshl_b32 {sX}, {sSG}, 4'); a(f's_add_u32 {sX}, {sX}, {sM}')
    a('s_mov_b32 s98, 0x05040100'); a('s_mov_b32 s99, 0x07060302')
    a(f's_lshl_b32 s11, {sSG}, 4')
    a(f's_add_u32 s11, s11, {sM}')
    a('s_lshl_b32 s11, s11, 2')
    a(f's_add_u32 s11, s11, {sW}')
    a('s_lshl_b32 s11, s11, 7')
    a(f's_add_u32 {sFL}, s11, {FLAG_OFF}')
    if o.prof:
        a(f'v_mov_b32 {vPROF}, 0')
    a('s_waitcnt lgkmcnt(0)')
    srd(a, 40, P_WS, WS_USED)
    stamp(a, 0)
    if o.prof and getattr(o, 'cyc', 0) != 2:
        a('s_memtime s[100:101]'); a('s_waitcnt lgkmcnt(0)'); a(f'v_writelane_b32 {vPROF}, s100, 61')
    a(f'buffer_load_dword v251, off, {WS}, 0 sc1')
    t_nonce = 'nonce'
    a(f's_cmp_eq_u32 {sW}, 1'); a('s_cbranch_scc1 L_ld1')
    a(f's_cmp_eq_u32 {sW}, 2'); a('s_cbranch_scc1 L_ld2')
    a(f's_cmp_eq_u32 {sW}, 3'); a('s_cbranch_scc1 L_ld3')
    ld_ln(a); a('s_branch L_role_ln')
    a.label('L_ld1'); ld_wo(a); a('s_branch L_role_wo')
    a.label('L_ld2'); ld_mod(a); a('s_branch L_role_mod')
    a.label('L_ld3'); ld_wq(a); a('s_branch L_role_wq')

TOK = {}
def ld_ln(a):
    a.reset_counts()
    srd(a, 44, P_X, S*D*2)
    a(f's_lshl_b32 s11, {sSG}, 4'); a(f's_add_u32 s11, s11, {sM}'); a(f's_mul_i32 s11, s11, {8*1280}')
    a(f'v_and_b32 v5, 7, {vL}'); a(f'v_lshrrev_b32 v6, 3, {vL}')
    a('v_mul_u32_u24 v7, 1280, v5'); a('v_lshl_add_u32 v7, v6, 4, v7')
    TOK['x'] = [a.vmem(f'buffer_load_dwordx4 {vr(8+4*t,4)}, v7, {SA}, s11 offen offset:{128*t}') for t in range(10)]
    TOK['x_vm'] = list(a.vm)

def ld_wo(a):
    a.reset_counts()
    if getattr(o, 'touch', 1):
        srd(a, 48, P_WMOD, D*6*D*2); srd(a, 52, P_WQKV, D*3*D*2)
        a(f'v_lshlrev_b32 v10, 7, {vL}')
        a('s_mul_i32 s11, s2, 19200')
        for k in range(3):
            a.vmem(f'buffer_load_dword v254, v10, {SB}, s11 offen', optional=True)
            if k < 2: a('s_add_u32 s11, s11, 6400')
        a('s_mul_i32 s11, s2, 9600')
        for k in range(2):
            a.vmem(f'buffer_load_dword v254, v10, {SC_}, s11 offen', optional=True)
            if k < 1: a('s_add_u32 s11, s11, 4800')
        a(f'v_lshlrev_b32 v11, 21, {vL}')
        a.vmem(f'buffer_load_dword v254, v11, {WS}, 0 offen', optional=True)
    srd(a, 44, P_WO, D*D*2)
    a(f's_lshr_b32 s84, {sM}, 3')
    a(f's_mul_i32 s85, {sSG}, 3'); a(f's_lshl_b32 s86, {sSG}, 1'); a('s_add_u32 s86, s86, 48')
    a('s_cmp_eq_u32 s84, 0'); a('s_cselect_b32 s85, s85, s86')
    a(f'v_mul_u32_u24 v5, 6554, {vL}'); a('v_lshrrev_b32 v5, 16, v5'); a('v_mul_u32_u24 v6, 10, v5'); a(f'v_sub_u32 v6, {vL}, v6')
    a('v_mul_u32_u24 v5, 1280, v5'); a('v_lshl_add_u32 v5, v6, 4, v5')
    a(f's_mul_i32 s11, s85, {8*1280}'); a(f's_and_b32 s12, {sM}, 7'); a('s_mul_i32 s12, s12, 160'); a('s_add_u32 s11, s11, s12')
    set_exec(a, (1 << 60)-1)
    for q in range(4):
        a(f's_mov_b32 m0, {L_STGO+960*q}')
        TOK['wo'] = a.vmem(f'buffer_load_dwordx4 v5, {SA}, s11 offen lds')
        if q < 3: a(f's_add_u32 s11, s11, {6*1280}')
    set_exec(a, (1 << 64)-1)
    TOK['wo_vm'] = list(a.vm)

def ld_mod(a):
    a.reset_counts()
    a('s_mul_i32 s84, s2, 1093'); a('s_lshr_b32 s84, s84, 16')
    a('s_mul_i32 s85, s84, 60'); a('s_sub_u32 s85, s2, s85')
    srd(a, 44, P_C, D*2)
    srd(a, 48, P_WMOD, D*6*D*2)
    a('s_mul_i32 s13, s84, 320')
    a(f'v_lshlrev_b32 v5, 3, {vL}')
    TOK['c'] = a.vmem(f'buffer_load_dwordx2 v[8:9], v5, {SA}, s13 offen')
    a(f'v_lshrrev_b32 v6, 3, {vL}'); a(f'v_and_b32 v7, 7, {vL}'); a('v_mul_u32_u24 v6, 7680, v6'); a('v_lshl_add_u32 v6, v7, 4, v6')
    a(f's_mul_i32 s13, s84, {160*7680}'); a('s_lshl_b32 s72, s85, 7'); a('s_add_u32 s13, s13, s72')
    a('s_cmp_lt_u32 s2, 240'); a('s_cselect_b32 s13, s13, 0x40000000')
    for t in range(20):
        a(f's_mov_b32 m0, {L_STG+1024*t}')
        TOK['wm'] = a.vmem(f'buffer_load_dwordx4 v6, {SB}, s13 offen lds')
        if t < 19: a(f's_add_u32 s13, s13, {8*7680}')
    TOK['mod_vm'] = list(a.vm)

def ld_wq(a):
    a.reset_counts()
    srd(a, 44, P_WQKV, D*3*D*2)
    a(f'v_mul_u32_u24 v5, 4370, {vL}'); a('v_lshrrev_b32 v5, 16, v5')
    a('v_mul_u32_u24 v6, 15, v5'); a(f'v_sub_u32 v6, {vL}, v6')
    a('v_mul_u32_u24 v7, 13108, v6'); a('v_lshrrev_b32 v7, 16, v7')
    a('v_mul_u32_u24 v5, 3840, v5'); a('v_lshl_add_u32 v5, v6, 4, v5'); a('v_mul_u32_u24 v7, 1200, v7'); a('v_add_u32 v5, v5, v7')
    a(f's_mul_i32 s11, {sSG}, {40*3840}'); a(f's_mul_i32 s12, {sM}, 80'); a('s_add_u32 s11, s11, s12')
    set_exec(a, (1 << 60)-1)
    for q in range(10):
        a(f's_mov_b32 m0, {L_STGQ+960*q}')
        TOK['wq'] = a.vmem(f'buffer_load_dwordx4 v5, {SA}, s11 offen lds')
        if q < 9: a(f's_add_u32 s11, s11, {4*3840}')
    set_exec(a, (1 << 64)-1)
    TOK['wq_vm'] = list(a.vm)

def cpf(a, label, off=0):
    a(f'v_add_u32 v253, ({label}-L_pc+{off}), v252')
    a('v_min_u32 v253, (L_code_end-L_pc-4), v253')
    a.vmem('global_load_dword v254, v253, s[14:15]', optional=True)

def get_nonce(a):
    a('v_readfirstlane_b32 s11, v251')
    a(f's_mul_i32 {sN}, s11, {hex(LCG_A)}')
    a(f's_add_u32 {sN}, {sN}, {hex(LCG_C)}')

def row_reduce16(a, v, t):
    for r in (8, 4, 2, 1):
        a(f'v_add_f32_dpp {v}, {v}, {v} row_ror:{r} row_mask:0xf bank_mask:0xf')

def pk(a, op, d, x, y, z=None):
    a(f'v_pk_{op}_f32 {vr(d,2)}, {vr(x,2)}, {vr(y,2)}' + (f', {vr(z,2)}' if z is not None else ''))

def pkb(op, d, *src):
    ops = []; sel = []; selhi = []
    for x in src:
        if isinstance(x, tuple):
            n = x[1]; ops.append(vr(n & ~1, 2)); sel.append(n & 1); selhi.append(n & 1)
        else:
            ops.append(vr(x, 2)); sel.append(0); selhi.append(1)
    t = f'v_pk_{op}_f32 {vr(d,2)}, ' + ', '.join(ops)
    if any(sel): t += ' op_sel:[' + ','.join(map(str, sel)) + ']'
    if not all(selhi): t += ' op_sel_hi:[' + ','.join(map(str, selhi)) + ']'
    return t

def cross8(a, v, t0, t1):
    a(f'v_add_f32_dpp {v}, {v}, {v} row_ror:8 row_mask:0xf bank_mask:0xf')
    for sw in ('v_permlane16_swap_b32', 'v_permlane32_swap_b32'):
        a(f'v_mov_b32 {t0}, {v}'); a(f'v_mov_b32 {t1}, {v}'); a(f'{sw} {t0}, {t1}'); a(f'v_add_f32 {v}, {t0}, {t1}')

def role_ln(a):
    a.comment('==== role (wave 0): LayerNorm of 8 rows -> xhat (f16, fragment-major)')
    a.label('L_role_ln')
    a.vm = list(TOK['x_vm']); a.lg = []
    toks = TOK['x']
    X = 8; U = 48
    a(f's_and_b32 s12, {sM}, 1'); a('s_lshl_b32 s12, s12, 3'); a('v_add_u32 v5, s12, v5'); a('v_lshlrev_b32 v5, 4, v5'); a('v_lshl_add_u32 v5, v6, 8, v5')
    a(f's_lshr_b32 s12, {sM}, 1'); a(f's_lshl_b32 s13, {sSG}, 3'); a('s_add_u32 s12, s12, s13'); a(f's_mul_i32 s12, s12, {TILE_B}'); a(f's_add_u32 s12, s12, {XH_OFF}')
    a('s_mov_b32 s13, 0xffff0000')
    fstamp(a, 25)
    for t in range(10):
        a.wait_vm(toks[t])
        if t == 0: get_nonce(a); fstamp(a, 26)
        for d in range(4):
            a(f'v_lshlrev_b32 {vr(U+8*t+2*d)}, 16, {vr(X+4*t+d)}')
            a(f'v_and_b32 {vr(U+8*t+2*d+1)}, s13, {vr(X+4*t+d)}')
    A = 128
    for k in range(4): pk(a, 'add', A+2*k, U+2*k, U+8+2*k)
    for e in range(8, 40): pk(a, 'add', A+2*(e % 4), A+2*(e % 4), U+2*e)
    pk(a, 'add', A, A, A+2); pk(a, 'add', A+4, A+4, A+6); pk(a, 'add', A, A, A+4)
    a(f'v_add_f32 v136, {vr(A)}, {vr(A+1)}')
    cross8(a, 'v136', 'v138', 'v139')
    a(f'v_mul_f32 v136, {hex(f2u(-1.0/640))}, v136'); a('v_mov_b32 v137, v136')
    for e in range(40): pk(a, 'add', U+2*e, U+2*e, 136)
    for k in range(4): pk(a, 'mul', A+2*k, U+2*k, U+2*k)
    for e in range(4, 40): pk(a, 'fma', A+2*(e % 4), U+2*e, U+2*e, A+2*(e % 4))
    pk(a, 'add', A, A, A+2); pk(a, 'add', A+4, A+4, A+6); pk(a, 'add', A, A, A+4)
    a(f'v_add_f32 v136, {vr(A)}, {vr(A+1)}')
    cross8(a, 'v136', 'v138', 'v139')
    a(f'v_mov_b32 v137, {hex(f2u(1e-5))}'); a(f'v_fmac_f32 v137, {hex(f2u(1.0/640))}, v136')
    a('v_rsq_f32 v136, v137'); a('v_mov_b32 v137, v136')
    fstamp(a, 27)
    for t in range(10):
        for d in range(4):
            pk(a, 'mul', U+8*t+2*d, U+8*t+2*d, 136)
        for d in range(4):
            a(f'v_cvt_pk_f16_f32 {vr(X+4*t+d)}, {vr(U+8*t+2*d)}, {vr(U+8*t+2*d+1)}')
        a.vmem(f'buffer_store_dwordx4 {vr(X+4*t,4)}, v5, {WS}, s12 offen offset:{2048*(t & 1)} sc1')
        if t & 1 and t < 9: a('s_add_u32 s12, s12, 4096')
    a.wait_all_vm()
    flag_store(a, 1)
    cpf(a, 'L_p1'); cpf(a, 'L_p1', 8192)
    stamp(a, 1)
    a(f's_lshl_b32 s11, {sSG}, 4'); a(f'v_add_u32 v7, s11, {vL}')
    a(f's_cmp_eq_u32 {sSG}, 0'); a('s_cselect_b32 s12, 16, 18')
    a('v_subrev_u32 v8, s12, v7'); a(f'v_cmp_gt_u32 vcc, 16, {vL}'); a('v_cndmask_b32 v7, v8, v7, vcc')
    a('v_lshlrev_b32 v7, 2, v7')
    a(f'v_subrev_u32 v8, 18, {vL}'); a(f'v_lshl_add_u32 v8, v8, 4, {sM}'); a('v_lshl_add_u32 v8, v8, 2, 3')
    a(f'v_cmp_gt_u32 vcc, 18, {vL}'); a('v_cndmask_b32 v7, v8, v7, vcc')
    a('v_lshlrev_b32 v7, 7, v7'); a(f'v_add_u32 v7, {FLAG_OFF}, v7')
    poll_flags(a, 'v7', 34, 1, 'v8')
    stamp(a, 2)
    a(f'v_lshlrev_b32 v8, 4, {vL}')
    a(f's_mul_i32 s83, {sM}, 153600'); a(f's_add_u32 s83, s83, {WQ_OFF}')
    for q in range(30, 60): wq_piece(a, 1024*q, 1024*q)
    stamp(a, 3)
    a('s_branch L_p0_join')

def tr_lane(a, pitch):
    a(f'v_lshrrev_b32 v20, 4, {vL}'); a(f'v_and_b32 v21, 15, {vL}'); a('v_and_b32 v22, 3, v21')
    a('v_lshrrev_b32 v23, 2, v21'); a(f'v_mul_u32_u24 v23, {pitch}, v23')

def role_wo(a):
    a.comment('==== role (wave 1): re-tile up to 3 k-chunks of W_o, then gather sa')
    a.label('L_role_wo')
    a.vm = list(TOK['wo_vm']); a.lg = []
    tr_lane(a, 160)
    a('v_lshlrev_b32 v24, 5, v20'); a('v_lshl_add_u32 v24, v22, 3, v24'); a('v_add_u32 v24, v24, v23'); a(f'v_add_u32 v24, {L_STGO}, v24')
    a('v_lshlrev_b32 v25, 3, v22'); a('v_add_u32 v25, v25, v23'); a(f'v_add_u32 v25, {L_STGO+128}, v25')
    a(f's_and_b32 s12, {sM}, 7'); a('s_mul_i32 s12, s12, 102400'); a(f's_add_u32 s12, s12, {WO_OFF}')
    a('v_mul_u32_u24 v26, 20480, v20'); a('v_lshl_add_u32 v26, v21, 4, v26'); a('v_add_u32 v26, s12, v26')
    a('v_lshlrev_b32 v27, 4, v21'); a(f'v_add_u32 v27, {4*20480}, v27'); a('v_add_u32 v27, s12, v27')
    a('v_mov_b32 v28, 0x40000000'); a(f'v_cmp_gt_u32 vcc, 16, {vL}'); a('v_cndmask_b32 v27, v28, v27, vcc')
    a.wait_vm(TOK['wo']); get_nonce(a)
    tk = []
    for t in range(3):
        for ab, v in ((0, 'v24'), (1, 'v25')):
            a.lds(f'ds_read_b64_tr_b16 {vr(32+8*t+4*ab,2)}, {v} offset:{8*160*t}')
            tk.append(a.lds(f'ds_read_b64_tr_b16 {vr(32+8*t+4*ab+2,2)}, {v} offset:{8*160*t+4*160}'))
    for t in range(3):
        a(f's_add_u32 s86, s85, {t}'); a('s_and_b32 s87, s86, 3'); a('s_lshr_b32 s86, s86, 2'); a('s_lshl_b32 s86, s86, 10'); a('s_lshl_b32 s87, s87, 8'); a('s_add_u32 s86, s86, s87')
        if t == 2: a('s_cmp_eq_u32 s84, 0'); a('s_cselect_b32 s86, s86, 0x40000000')
        a.wait_lg(tk[2*t+1])
        a.vmem(f'buffer_store_dwordx4 {vr(32+8*t,4)}, v26, {WS}, s86 offen sc1')
        a.vmem(f'buffer_store_dwordx4 {vr(32+8*t+4,4)}, v27, {WS}, s86 offen sc1')
    stamp(a, 1)
    gather_gs(a, 0)
    stamp(a, 3)
    a('s_branch L_p0_join')

def f2u(x):
    import struct
    return struct.unpack('<I', struct.pack('<f', x))[0]

def gather_vec(a, colbase_s, nload, V, plus_one, lds_addr_v, label):
    L = newlab('gath'); Ld = newlab('gathd')
    a(f'v_lshlrev_b32 v5, 4, {vL}')
    a(f's_lshl_b32 s11, {colbase_s}, 3')
    a(f's_add_u32 s11, s11, {GRAN_OFF}')
    a(f's_mov_b32 s73, {o.spin}')
    a.label(L)
    a('s_mov_b32 s12, s11')
    for kq in range(4):
        for t in range(nload):
            a(f'buffer_load_dwordx4 {vr(V+(kq*nload+t)*4,4)}, v5, {WS}, s12 offen offset:{1024*t if 1024*t < 4096 else 0} sc1' if t < 4 else
              f'buffer_load_dwordx4 {vr(V+(kq*nload+t)*4,4)}, v5, {WS}, s13 offen sc1')
            if t == 3 and nload > 4: a(f's_add_u32 s13, s12, 4096')
        if kq < 3: a(f's_add_u32 s12, s12, {3840*8}')
    a('s_waitcnt vmcnt(0)'); a.vm = []
    n = 4*nload
    a(f'v_max_u32 v6, {vr(V+1)}, {vr(V+3)}')
    a(f'v_min_u32 v7, {vr(V+1)}, {vr(V+3)}')
    for q in range(1, n):
        a(f'v_max3_u32 v6, v6, {vr(V+4*q+1)}, {vr(V+4*q+3)}')
        a(f'v_min3_u32 v7, v7, {vr(V+4*q+1)}, {vr(V+4*q+3)}')
    a(f'v_cmp_ne_u32 vcc, {sN}, v6')
    a(f'v_cmp_ne_u32 s[74:75], {sN}, v7')
    a('s_or_b64 vcc, vcc, s[74:75]')
    a('s_sub_u32 s73, s73, 1')
    a('s_cmp_eq_u32 s73, 0')
    a(f's_cbranch_scc1 {Ld}')
    a(f's_cbranch_vccnz {L}')
    a.label(Ld)
    fstamp(a, 29)
    for t in range(nload):
        for h in (0, 2):
            b0 = V+4*t+h
            a(f'v_add_f32 {vr(b0)}, {vr(b0)}, {vr(V+4*(nload+t)+h)}')
            a(f'v_add_f32 {vr(V+4*(2*nload+t)+h)}, {vr(V+4*(2*nload+t)+h)}, {vr(V+4*(3*nload+t)+h)}')
            a(f'v_add_f32 {vr(b0)}, {vr(b0)}, {vr(V+4*(2*nload+t)+h)}')
    a('s_mov_b32 s13, 0xffff0000')
    for t in range(nload):
        p = V+4*t
        a(f'v_cvt_pk_bf16_f32 {vr(p+1)}, {vr(p)}, {vr(p+2)}')
        if plus_one:
            a(f'v_lshlrev_b32 {vr(p)}, 16, {vr(p+1)}')
            a(f'v_and_b32 {vr(p+2)}, s13, {vr(p+1)}')
            a(f'v_add_f32 {vr(p)}, 1.0, {vr(p)}')
            a(f'v_add_f32 {vr(p+2)}, 1.0, {vr(p+2)}')
            a(f'v_cvt_pk_bf16_f32 {vr(p+1)}, {vr(p)}, {vr(p+2)}')
        a(f'v_lshlrev_b32 {vr(p+2)}, 16, {vr(p+1)}')
        a(f'v_and_b32 {vr(p+3)}, s13, {vr(p+1)}')

def gather_gs(a, which):
    V = 8
    if getattr(o, 'probe', 0): probe_granules(a, which)
    fstamp(a, 28)
    a(f's_mov_b32 s76, {640*which}')
    gather_vec(a, 's76', 5, V, which == 1, None, None)
    a(f'v_lshlrev_b32 v5, 3, {vL}')
    a(f'v_add_u32 v5, {L_G1 if which else L_S1}, v5')
    for t in range(5):
        a.lds(f'ds_write_b64 v5, {vr(V+4*t+2,2)} offset:{512*t}')
    a.wait_all_lg()

def probe_granules(a, which):
    L = newlab('probe'); Ld = newlab('probed')
    a(f'v_mul_u32_u24 v5, 6554, {vL}'); a('v_lshrrev_b32 v5, 16, v5')
    a('v_mul_u32_u24 v6, 10, v5'); a(f'v_sub_u32 v6, {vL}, v6')
    a('v_mul_u32_u24 v5, 3840, v5'); a('v_lshl_add_u32 v5, v6, 6, v5'); a(f'v_add_u32 v5, {640*which+63}, v5')
    a('v_lshlrev_b32 v5, 3, v5'); a(f'v_add_u32 v5, {GRAN_OFF+4}, v5')
    set_exec(a, (1 << 40)-1)
    a(f's_mov_b32 s73, {o.spin}')
    a.label(L)
    a(f'buffer_load_dword v6, v5, {WS}, 0 offen sc1')
    a('s_waitcnt vmcnt(0)'); a.vm = []
    a(f'v_cmp_ne_u32 vcc, {sN}, v6')
    a('s_sub_u32 s73, s73, 1'); a('s_cmp_eq_u32 s73, 0'); a(f's_cbranch_scc1 {Ld}'); a(f's_cbranch_vccnz {L}')
    a.label(Ld)
    set_exec(a, (1 << 64)-1)

def role_mod(a):
    a.comment('==== role: mod partial (wave 2): silu(c)[160 kq..] @ w_mod[160 rows, 64 cols] via MFMA')
    a.label('L_role_mod')
    a.vm = list(TOK['mod_vm']); a.lg = []
    tc, td = TOK['c'], TOK['wm']
    a('s_mov_b32 s11, s84'); a('s_mov_b32 s12, s85')
    a('s_mul_i32 s13, s11, 3840')
    a('s_lshl_b32 s72, s12, 6')
    a('s_add_u32 s13, s13, s72')
    a('s_lshl_b32 s13, s13, 3')
    a(f's_add_u32 s76, s13, {GRAN_OFF}'); a('s_cmp_lt_u32 s2, 240'); a('s_cselect_b32 s76, s76, 0x40000000')
    a(f'v_lshrrev_b32 v20, 4, {vL}')
    a('v_lshlrev_b32 v21, 5, v20')
    a(f'v_and_b32 v22, 15, {vL}')
    a('v_lshrrev_b32 v23, 2, v22')
    a('v_lshl_add_u32 v23, v20, 3, v23')
    a('v_lshlrev_b32 v23, 7, v23')
    a('v_and_b32 v24, 3, v22')
    a('v_lshl_add_u32 v23, v24, 3, v23')
    a(f'v_add_u32 v23, {L_STG}, v23')
    a('v_lshlrev_b32 v25, 4, v20')
    a(f'v_add_u32 v25, {L_SC}, v25')
    fstamp(a, 25)
    a.wait_vm(tc)
    get_nonce(a)
    fstamp(a, 26)
    a('s_mov_b32 s13, 0xffff0000')
    a('v_lshlrev_b32 v10, 16, v8'); a('v_and_b32 v11, s13, v8')
    a('v_lshlrev_b32 v12, 16, v9'); a('v_and_b32 v13, s13, v9')
    for k in range(4): a(f'v_mul_f32 {vr(14+k)}, {hex(f2u(-1.4426950408889634))}, {vr(10+k)}')
    for k in range(4): a(f'v_exp_f32 {vr(14+k)}, {vr(14+k)}')
    for k in range(4): a(f'v_add_f32 {vr(14+k)}, 1.0, {vr(14+k)}')
    for k in range(4): a(f'v_rcp_f32 {vr(14+k)}, {vr(14+k)}')
    for k in range(4): a(f'v_mul_f32 {vr(10+k)}, {vr(10+k)}, {vr(14+k)}')
    a('v_cvt_pk_bf16_f32 v10, v10, v11'); a('v_cvt_pk_bf16_f32 v11, v12, v13')
    a(f'v_add_u32 v5, {L_SC}, v5')
    a.lds('ds_write_b64 v5, v[10:11]')
    a.wait_all_lg()
    a.wait_vm(td)
    stamp(a, 1)
    ACC = 32; WF = 48; VF = 64
    for s in range(5):
        vf = VF+4*(s & 1)
        tv = a.lds(f'ds_read_b128 {vr(vf,4)}, v25 offset:{64*s}')
        tw = []
        for nt in range(4):
            a.lds(f'ds_read_b64_tr_b16 {vr(WF+4*nt,2)}, v23 offset:{4096*s+32*nt}')
            tw.append(a.lds(f'ds_read_b64_tr_b16 {vr(WF+4*nt+2,2)}, v23 offset:{4096*s+32*nt+512}'))
        for nt in range(4):
            a.wait_lg(tw[nt])
            c = '0' if s == 0 else vr(ACC+4*nt, 4)
            a(f'v_mfma_f32_16x16x32_bf16 {vr(ACC+4*nt,4)}, {vr(WF+4*nt,4)}, {vr(vf,4)}, {c}')
    a('v_cmp_eq_u32 vcc, 1, v22'); a('v_lshl_add_u32 v21, v22, 4, v21')
    set_exec(a, 0x0003000300030003)
    for nt in range(4):
        b = 72+4*nt
        a(f'v_cndmask_b32 {vr(b)}, {vr(ACC+4*nt)}, {vr(ACC+4*nt+2)}, vcc'); a(f'v_mov_b32 {vr(b+1)}, {sN}')
        a(f'v_cndmask_b32 {vr(b+2)}, {vr(ACC+4*nt+1)}, {vr(ACC+4*nt+3)}, vcc'); a(f'v_mov_b32 {vr(b+3)}, {sN}')
        a.vmem(f'buffer_store_dwordx4 {vr(b,4)}, v21, {WS}, s76 offen offset:{128*nt} sc1')
    a('s_mov_b64 exec, -1')
    a.reset_counts()
    stamp(a, 2)
    gather_gs(a, 1)
    stamp(a, 3)
    a('s_branch L_p0_join')

def wq_piece(a, lds_addr, src_off, vaddr='v8'):
    a(f's_mov_b32 m0, {lds_addr}')
    a(f's_add_u32 s91, s83, {src_off}')
    return a.vmem(f'buffer_load_dwordx4 {vaddr}, {WS}, s91 offen sc1 lds')

def role_wq(a):
    a.comment('==== role (wave 3): re-tile 40 rows of this member slice of Wqkv, then stream the whole slice into LDS')
    a.label('L_role_wq')
    a.vm = list(TOK['wq_vm']); a.lg = []
    tr_lane(a, 240)
    a('v_mul_u32_u24 v24, 40, v20'); a('v_lshl_add_u32 v24, v22, 3, v24'); a('v_add_u32 v24, v24, v23'); a(f'v_add_u32 v24, {L_STGQ}, v24')
    a('v_mul_u32_u24 v25, 40, v20'); a('v_add_u32 v25, 120, v25'); a('v_lshl_add_u32 v25, v22, 3, v25')
    a('v_mul_u32_u24 v28, 40, v22'); a('v_add_u32 v28, 32, v28'); a('v_cmp_eq_u32 vcc, 0, v20'); a('v_cndmask_b32 v25, v25, v28, vcc')
    a('v_and_b32 v28, 1, v22'); a('v_mul_u32_u24 v28, 40, v28'); a('v_add_u32 v28, 192, v28'); a('v_cmp_eq_u32 vcc, 3, v20'); a('v_cndmask_b32 v25, v25, v28, vcc')
    a('v_add_u32 v25, v25, v23'); a(f'v_add_u32 v25, {L_STGQ}, v25')
    a(f's_mul_i32 s12, {sM}, 153600'); a(f's_add_u32 s12, s12, {WQ_OFF}')
    a('v_lshlrev_b32 v26, 10, v20'); a('v_lshl_add_u32 v26, v21, 4, v26'); a('v_add_u32 v26, s12, v26')
    a('v_add_u32 v27, 4096, v26')
    a('v_mov_b32 v29, 256'); a('v_mov_b32 v30, 128'); a('v_cndmask_b32 v29, v29, v30, vcc')
    a('v_cmp_le_u32 s[74:75], 8, v21'); a('s_and_b64 vcc, vcc, s[74:75]'); a('v_mov_b32 v30, 0x40000000'); a('v_cndmask_b32 v27, v27, v30, vcc')
    a(f's_mul_i32 s84, {sSG}, 5')
    fstamp(a, 25)
    a.wait_vm(TOK['wq']); get_nonce(a)
    fstamp(a, 26)
    tk = []
    for t in range(5):
        for ab, v in ((0, 'v24'), (1, 'v25')):
            a.lds(f'ds_read_b64_tr_b16 {vr(32+8*t+4*ab,2)}, {v} offset:{8*240*t}')
            tk.append(a.lds(f'ds_read_b64_tr_b16 {vr(32+8*t+4*ab+2,2)}, {v} offset:{8*240*t+4*240}'))
    for t in range(5):
        a(f's_add_u32 s85, s84, {t}'); a('s_and_b32 s87, s85, 3'); a('s_lshr_b32 s86, s85, 2'); a('s_mul_i32 s86, s86, 7680')
        a('s_lshl_b32 s88, s87, 8'); a('v_add_u32 v9, s88, v26'); a('v_mad_u32_u24 v10, s87, v29, v27')
        a.wait_lg(tk[2*t+1])
        a.vmem(f'buffer_store_dwordx4 {vr(32+8*t,4)}, v9, {WS}, s86 offen sc1')
        a.vmem(f'buffer_store_dwordx4 {vr(32+8*t+4,4)}, v10, {WS}, s86 offen sc1')
    fstamp(a, 27)
    a.wait_all_vm()
    flag_store(a, 1)
    stamp(a, 1)
    a(f'v_lshl_add_u32 v5, {vL}, 4, {sM}'); a('v_lshl_add_u32 v5, v5, 2, 3'); a('v_lshlrev_b32 v5, 7, v5'); a(f'v_add_u32 v5, {FLAG_OFF}, v5')
    poll_flags(a, 'v5', 16, 1, 'v6')
    stamp(a, 2)
    a(f'v_lshlrev_b32 v8, 4, {vL}')
    a(f's_mul_i32 s83, {sM}, 153600'); a(f's_add_u32 s83, s83, {WQ_OFF}')
    toks = [wq_piece(a, 1024*q, 1024*q) for q in range(30)]
    a.wait_vm(toks[29])
    stamp(a, 3)

def build():
    a = Asm()
    prologue(a)
    role_ln(a)
    role_wo(a)
    role_mod(a)
    role_wq(a)
    a.label('L_p0_join')
    a.reset_counts()
    a('s_barrier')
    a.label('L_p1')
    stamp(a, 4)
    from gen_p1 import phase1
    if o.stop >= 1: phase1(a, o)
    if o.stop >= 2:
        from gen_p2 import phase2
        tl = phase2(a, o)
        if o.stop == 2:
            a.wait_all_vm(); flag_store(a, 6)
    if o.stop >= 3:
        from gen_p3 import phase3
        phase3(a, o, tl)
    if o.stop >= 4:
        from gen_p4 import phase4
        phase4(a, o)
    a('s_waitcnt vmcnt(0) lgkmcnt(0)')
    if o.prof:
        stamp(a, 63)
        a('s_memtime s[100:101]'); a('s_waitcnt lgkmcnt(0)'); a(f'v_writelane_b32 {vPROF}, s100, 62')
        if getattr(o, 'dbg', 0):
            Ld = newlab('nodbg')
            a(f's_or_b32 s11, s2, {sW}'); a('s_cmp_lg_u32 s11, 0'); a(f's_cbranch_scc1 {Ld}')
            srd(a, 44, P_DBG, 256)
            a(f'v_readlane_b32 s12, {vPROF}, 0')
            for n, k in enumerate([4, 5, 6, 9, 10, 13, 14, 16, 17, 19, 21, 22, 23, 24, 63, 1]):
                a(f'v_readlane_b32 s13, {vPROF}, {k}'); a('s_sub_u32 s13, s13, s12'); a('v_mov_b32 v1, s13')
                a(f'buffer_store_dword v1, off, {SA}, 0 offset:{4*n}')
            a('s_waitcnt vmcnt(0)')
            a.label(Ld)
        a('s_lshl_b32 s11, s2, 2')
        a(f's_add_u32 s11, s11, {sW}')
        a('s_lshl_b32 s11, s11, 8')
        a(f's_add_u32 s11, s11, {PROF_OFF}')
        a(f'v_lshlrev_b32 v1, 2, {vL}')
        a(f'buffer_store_dword {vPROF}, v1, {WS}, s11 offen')
        a('s_waitcnt vmcnt(0)')
    a.label('L_exit')
    a('s_endpgm')
    emit_slow(a)
    a.label('L_code_end')
    lines, nn = hazard_pass(a.items)
    return lines, nn

HEADER = open('adaLN_cond__sliding_local_dilated__geglu_ffn__prompt.s.ref').read().split('; Override launch')[0]

def emit(path):
    lines, nn = build()
    s = HEADER
    s += '; One persistent launch: 256 workgroups (one per CU), phases handed over through tagged flags in d_ws.\n'
    s += f'; @launch grid=(256,1,1) block=(256,1,1) lds={LDS_TOTAL}\n'
    s += '.amdgcn_target "amdgcn-amd-amdhsa--gfx950"\n.text\n'
    s += f'.globl {KNAME}\n.p2align 8\n.type {KNAME},@function\n{KNAME}:\n'
    s += '\n'.join(lines)+'\n'
    s += f'''.section .rodata,"a"
.p2align 6
.amdhsa_kernel {KNAME}
  .amdhsa_next_free_vgpr 512
  .amdhsa_next_free_sgpr 102
  .amdhsa_accum_offset 256
  .amdhsa_group_segment_fixed_size 0
  .amdhsa_kernarg_size 96
  .amdhsa_user_sgpr_count 2
  .amdhsa_user_sgpr_kernarg_segment_ptr 1
  .amdhsa_system_sgpr_workgroup_id_x 1
  .amdhsa_float_denorm_mode_32 3
.end_amdhsa_kernel
'''
    open(path, 'w').write(s)
    return len(lines), nn

if __name__ == '__main__':
    ap = argparse.ArgumentParser()
    ap.add_argument('-o', default='k.s')
    ap.add_argument('--stop', type=int, default=99)
    ap.add_argument('--prof', action='store_true')
    ap.add_argument('--npre', type=int, default=2)
    ap.add_argument('--fine', type=int, default=0)
    ap.add_argument('--cyc', type=int, default=0)
    ap.add_argument('--map2d', type=int, default=1)
    ap.add_argument('--dbg', type=int, default=0)
    ap.add_argument('--touch', type=int, default=0)
    ap.add_argument('--probe', type=int, default=1)
    ap.add_argument('--outst', type=int, default=0)
    args = ap.parse_args()
    o.stop = args.stop; o.prof = args.prof; o.npre = args.npre; o.fine = args.fine; o.cyc = args.cyc; o.map2d = args.map2d; o.dbg = args.dbg; o.touch = args.touch; o.probe = args.probe; o.outst = args.outst
    n, nn = emit(args.o)
    print(f'{args.o}: {n} lines, {nn} inserted nops')
```

```python
from layout import *
import gen as G
from gen import cpf, vr, ar, stamp, set_exec, flag_store, poll_flags, WS, SA, SB, SC_, sW, sSG, sM, sN, sFL, vL, f2u, srd, newlab

import repack as RP
from gen import flags_issue, flags_check, pkb
vT16, vT16b, vA, vAV, vGS = 'v8', 'v9', 'v10', 'v11', 'v12'
vHA, vHAV, vHG = 'v13', 'v14', 'v15'
vSG_, vSD_, vSM_, vFP = 'v16', 'v17', 'v18', 'v19'
vWOF = 'v244'; vO1, vO2, vO3 = 'v245', 'v246', 'v247'
ACC = 20; XR = 84; DEPTH = 8; HB = 148; HH = 164; GS = 168; TMP = 200; HRAW = 208; HGS = 228
AHACC = 64; COLD = 144
def wf(i, t): return (88 if i % 2 == 0 else 218)+4*t
def hwf(u, n): return (120 if u % 2 == 0 else 176)+4*n
def acc(T, t): return ACC+(T*8+t)*4
def xr(i, T): return XR+((i % DEPTH)*2+T)*4
def hb(i, T): return HB+((i & 1)*2+T)*4
def gs(i): return GS+(i & 1)*16
sKC = ['s18', 's19', 's30', 's31']; sPITCH = 's32'; SMIX = 's[20:23]'
MCUR = [f's[{56+2*r}:{57+2*r}]' for r in range(4)]
MPRV = [f's[{64+2*r}:{65+2*r}]' for r in range(4)]
MG0, MG1 = 's[92:93]', 's[94:95]'

def waddr(t, i, halo=False):
    ib = 4*(i % 2) if halo else (i % 8)
    if t == 7: return (vHAV if halo else vAV), ib*7680+7168
    return (vHA if halo else vA), ib*7680+1024*t

def transform_ops(src, dst, g, tmp=TMP):
    mix = []
    for d in range(4):
        t0 = tmp+2*d; t1 = t0+1
        mix.append(f'v_fma_mix_f32 {vr(t0)}, {vr(src+d)}, {vr(g+2*d)}, {vr(g+8+2*d)} op_sel_hi:[1,0,0]')
        mix.append(f'v_fma_mix_f32 {vr(t1)}, {vr(src+d)}, {vr(g+2*d+1)}, {vr(g+8+2*d+1)} op_sel:[1,0,0] op_sel_hi:[1,0,0]')
    cv = [f'v_cvt_pk_bf16_f32 {vr(dst+d)}, {vr(tmp+2*d)}, {vr(tmp+2*d+1)}' for d in range(4)]
    return mix[0:4]+[cv[0]]+mix[4:6]+[cv[1]]+mix[6:8]+[cv[2], cv[3]]

def gs_reads(i, addr, dst):
    return [f'ds_read_b128 {vr(dst+r,4)}, {addr} offset:{128*i+o2}' for (o2, r) in ((0, 0), (16, 4), (2560, 8), (2576, 12))]

HT = [2, 3, 4, 5, 6, 7]
H0 = 10
C0 = 11

def cold_scalars(a):
    a(f's_mul_i32 s11, {sSG}, 5'); a(f's_add_u32 {sKC[0]}, s11, {sW}'); a(f's_mov_b32 {sKC[1]}, {sKC[0]}')
    a(f's_lshl_b32 s12, {sSG}, 1'); a(f's_lshr_b32 s13, {sM}, 3'); a('s_add_u32 s12, s12, s13'); a('s_mul_i32 s12, s12, 6')
    a(f's_add_u32 {sKC[3]}, s12, {sW}'); a(f's_add_u32 {sKC[3]}, {sKC[3]}, 2')
    a('s_add_u32 s11, s11, 4'); a(f's_add_u32 s12, s12, {sW}'); a('s_sub_u32 s12, s12, 2')
    a(f's_cmp_lt_u32 {sW}, 2'); a(f's_cselect_b32 {sKC[2]}, s11, s12')

def cold_setup(a):
    RP.srd_for(a, 44, G.P_WG, D*F*2); RP.srd_for(a, 48, G.P_WU, D*F*2); RP.srd_for(a, 52, G.P_WD, D*F*2)
    a(f's_cmp_eq_u32 {sW}, 0'); a(f's_cselect_b32 s20, s{G.P_WG}, s{G.P_WU}'); a(f's_cselect_b32 s21, s{G.P_WG+1}, s{G.P_WU+1}')
    a(f's_cmp_lt_u32 {sW}, 2'); a(f's_cselect_b32 s20, s20, s{G.P_WD}'); a(f's_cselect_b32 s21, s21, s{G.P_WD+1}')
    a(f's_mov_b32 s22, {D*F*2}'); a('s_mov_b32 s23, 0x20000')
    a(f's_movk_i32 {sPITCH}, 1280'); a(f's_cselect_b32 {sPITCH}, 3072, {sPITCH}')
    cold_scalars(a)
    a(f'v_mul_u32_u24 v1, 5462, {vL}'); a('v_lshrrev_b32 v1, 16, v1'); a('v_mul_u32_u24 v2, 12, v1'); a(f'v_sub_u32 v2, {vL}, v2')
    a('v_mul_u32_u24 v1, 3072, v1'); a('v_lshl_add_u32 v1, v2, 4, v1'); a(f's_mul_i32 s11, {sM}, 192'); a(f'v_add_u32 {vSG_}, s11, v1')
    a(f'v_mul_u32_u24 v1, 6554, {vL}'); a('v_lshrrev_b32 v1, 16, v1'); a('v_mul_u32_u24 v2, 10, v1'); a(f'v_sub_u32 v2, {vL}, v2')
    a('v_mul_u32_u24 v1, 1280, v1'); a('v_lshl_add_u32 v1, v2, 4, v1'); a(f's_and_b32 s11, {sM}, 7'); a('s_mul_i32 s11, s11, 160'); a(f'v_add_u32 {vSD_}, s11, v1')
    a('v_mov_b32 v3, 0x40000000')
    a(f'v_cmp_gt_u32 vcc, 60, {vL}'); a(f'v_cndmask_b32 {vSG_}, v3, {vSG_}, vcc'); a(f'v_cndmask_b32 {vSD_}, v3, {vSD_}, vcc')
    a(f's_cmp_lt_u32 {sW}, 2'); a('s_cselect_b64 s[74:75], -1, 0'); a(f'v_cndmask_b32 {vSM_}, {vSD_}, {vSG_}, s[74:75]')

def cold_ops(a, j, st):
    srd_, pitch, vs, nB, rowsA = [(SA, 3072, vSG_, 36, 5), (SB, 3072, vSG_, 36, 5), (SMIX, sPITCH, vSM_, None, None), (SC_, 1280, vSD_, 20, 6)][j]
    def fa():
        if isinstance(pitch, int): a(f's_mul_i32 s86, {sKC[j]}, {8*pitch}')
        else: a(f's_mul_i32 s86, {sKC[j]}, {pitch}'); a('s_lshl_b32 s86, s86, 3')
        a.vmem(f'buffer_load_dwordx4 {ar(COLD+8*j,4)}, {vs}, {srd_}, s86 offen')
    def fb():
        if nB: a(f's_add_u32 s86, s86, {rowsA*pitch}')
        else:
            a(f's_movk_i32 s87, {6*1280}'); a(f's_cmp_lt_u32 {sW}, 2'); a(f's_cselect_b32 s87, {5*3072}, s87'); a('s_add_u32 s86, s86, s87')
        st['cold'] = a.vmem(f'buffer_load_dwordx4 {ar(COLD+8*j+4,4)}, {vs}, {srd_}, s86 offen')
    return [fa, fb]

def attention_setup(a):
    a(f'v_and_b32 v2, 15, {vL}'); a(f'v_lshrrev_b32 v3, 4, {vL}')
    a('v_lshlrev_b32 v4, 2, v3'); a('v_sub_u32 v4, v2, v4')
    for r in range(4):
        a(f'v_subrev_u32 v5, {r}, v4')
        a('v_and_b32 v6, 0xfffffff1, v5'); a(f'v_cmp_eq_u32 {MCUR[r]}, 0, v6')
        a('v_add_u32 v5, 16, v5'); a('v_and_b32 v6, 0xfffffff1, v5'); a(f'v_cmp_eq_u32 {MPRV[r]}, 0, v6')
    a(f'v_cmp_eq_u32 {MG0}, 0, v3'); a(f'v_cmp_eq_u32 {MG1}, 1, v3')
    a('v_lshlrev_b32 v2, 4, v2')
    a('v_lshrrev_b32 v4, 1, v3'); a('v_lshl_add_u32 v4, v4, 8, v2'); a('v_and_b32 v5, 1, v3'); a(f'v_lshl_add_u32 {vO1}, v5, 3, v4')
    a('v_add_u32 v5, 5, v3'); a('v_lshrrev_b32 v6, 1, v5'); a('v_lshl_add_u32 v6, v6, 8, v2'); a('v_and_b32 v5, 1, v5'); a(f'v_lshl_add_u32 {vO2}, v5, 3, v6')
    a('v_mul_u32_u24 v7, 520, v3'); a('v_add_u32 v7, 512, v7'); a(f'v_add_u32 {vO3}, v7, v2')

def phase1(a, o):
    a.comment('================ phase 1')
    a.reset_counts()
    a(f'v_lshlrev_b32 {vT16}, 4, {vL}')
    a(f'v_add_u32 {vT16b}, {TILE_B}, {vT16}')
    a(f's_lshl_b32 s11, {sSG}, 3'); a(f's_lshl_b32 s12, {sW}, 1'); a('s_add_u32 s11, s11, s12')
    a(f's_mul_i32 s11, s11, {TILE_B}'); a(f's_add_u32 s78, s11, {XH_OFF}')
    xt = {}
    def xload(i):
        xt[(i, 0)] = a.vmem(f'buffer_load_dwordx4 {vr(xr(i,0),4)}, {vT16}, {WS}, s78 offen offset:{1024*(i % 4)} sc1')
        xt[(i, 1)] = a.vmem(f'buffer_load_dwordx4 {vr(xr(i,1),4)}, {vT16b}, {WS}, s78 offen offset:{1024*(i % 4)} sc1')
        if i % 4 == 3: a('s_add_u32 s78, s78, 4096')
    for i in range(2): xload(i)
    a(f'v_mov_b32 {vA}, {vT16}')
    a(f'v_lshrrev_b32 v1, 4, {vL}')
    a(f'v_and_b32 v2, 7, {vL}')
    a(f'v_lshlrev_b32 {vAV}, 7, v1'); a(f'v_lshl_add_u32 {vAV}, v2, 4, {vAV}')
    a(f'v_lshlrev_b32 {vGS}, 5, v1'); a(f'v_add_u32 {vGS}, {L_G1}, {vGS}')
    wt = {}; gt = {}
    def wread(t, i):
        v, off = waddr(t, i)
        wt[(t, i)] = a.lds(f'ds_read_b128 {ar(wf(i,t),4)}, {v} offset:{off}')
    for i in (0, 1):
        for op in gs_reads(i, vGS, gs(i)): gt[i] = a.lds(op)
    for t in range(8): wread(t, 0)
    xload(2); xload(3)
    a(f's_mul_i32 s11, {sW}, 7680')
    a(f'v_add_u32 {vHA}, s11, {vA}'); a(f'v_add_u32 {vHAV}, s11, {vAV}')
    a(f's_lshl_b32 s11, {sW}, 7'); a(f'v_add_u32 {vHG}, s11, {vGS}')
    a(f's_lshl_b32 s11, {sSG}, 3'); a('s_sub_u32 s12, s11, 1'); a(f's_cmp_eq_u32 {sSG}, 0'); a('s_cselect_b32 s11, 0, s12')
    a(f's_mul_i32 s11, s11, {TILE_B}'); a(f's_lshl_b32 s12, {sW}, 10'); a('s_add_u32 s11, s11, s12'); a(f's_add_u32 s79, s11, {XH_OFF}')
    a(f's_mul_i32 s83, {sM}, 153600'); a(f's_add_u32 s83, s83, {WQ_OFF}'); a(f's_lshl_b32 s90, {sW}, 10'); a('s_add_u32 s83, s83, s90')
    xload(4); xload(5)
    cold_setup(a)
    from gen_p2 import phase2_prefetch_setup
    phase2_prefetch_setup(a, o)
    xload(6); xload(7)
    attention_setup(a)
    a(f'v_bfe_u32 v1, {vL}, 1, 4'); a('v_lshlrev_b32 v1, 4, v1')
    a(f'v_and_b32 v2, 1, {vL}'); a('v_lshl_add_u32 v1, v2, 3, v1'); a(f's_and_b32 s11, {sM}, 7'); a('v_add_u32 v1, s11, v1')
    a('v_lshl_add_u32 v1, v1, 2, 1'); a('v_lshlrev_b32 v1, 7, v1'); a(f'v_add_u32 {vWOF}, {FLAG_OFF}, v1')
    a.wait_vm(xt[(0, 1)]); a.wait_lg(gt[0])
    for T in (0, 1):
        for op in transform_ops(xr(0, T), hb(0, T), gs(0)): a(op)
    xload(DEPTH)
    stamp(a, 5)
    dma_tok = {}
    def wq_dma(g, t):
        q4 = 4*t
        if t < 7:
            a(f's_add_u32 m0, s90, {g*30720+1024*q4}'); a(f's_add_u32 s91, s83, {g*30720+1024*q4}')
        else:
            a(f's_and_b32 s91, s90, 1024'); a(f's_add_u32 m0, s91, {g*30720+1024*28}')
            a('s_sub_u32 s91, s91, s90'); a('s_add_u32 s91, s91, s83'); a(f's_add_u32 s91, s91, {g*30720+1024*28}')
        dma_tok[g] = a.vmem(f'buffer_load_dwordx4 {vT16}, {WS}, s91 offen sc1 lds')
    bar = {3: [], 7: [2], 11: [3], 13: [4], 15: []}
    hw = {}; hg = {}; ht = []
    st = dict(r=None, cold=None)
    for i in range(20):
        nxt = i+1 < 20
        u = i-H0
        hal = 0 <= u < 5
        if getattr(o, 'fine', 0) == 1 and i > 0: stamp(a, 30+i)
        if i in bar:
            for g in bar[i]: a.wait_vm(dma_tok[g])
            if i == 15: flags_check(a, st['r'], vWOF, vFP, 2)
            a('s_barrier')
            if i == 15:
                a(f's_and_b32 s11, {sM}, 7'); a('s_mul_i32 s84, s11, 102400'); a(f's_mul_i32 s85, {sW}, 25600'); a('s_add_u32 s84, s84, s85'); a(f's_add_u32 s84, s84, {WO_OFF}')
        mf = []
        for t in range(8): mf += [('m', t, 0), ('m', t, 1)]
        if hal: mf += [('h', n, 0) for n in range(6)]
        fill = []
        if hal: fill += ['XH']+transform_ops(HRAW+4*u, HH, HGS)
        if nxt: fill += ['X0']+transform_ops(xr(i+1, 0), hb(i+1, 0), gs(i+1))+transform_ops(xr(i+1, 1), hb(i+1, 1), gs(i+1))
        dsq = []
        if i+2 < 20: dsq += gs_reads(i+2, vGS, gs(i+2))
        hnext = H0 <= i+1 < H0+5
        vm = []
        if i < 12: vm += [lambda q=q: wq_dma(2+q//8, q % 8) for q in range(2*i, 2*i+2)]
        if 4 <= i < 9:
            def hl(uu):
                ht.append(a.vmem(f'buffer_load_dwordx4 {vr(HRAW+4*uu,4)}, {vT16}, {WS}, s79 offen sc1'))
                if uu < 4: a('s_add_u32 s79, s79, 4096')
            vm.append(lambda uu=i-4: hl(uu))
        if i >= 15:
            for t in range(5*(i-15), 5*(i-15)+5):
                def wo(t=t):
                    if t % 4 == 0: a(f's_add_u32 m0, s85, {1024*t}')
                    a.vmem(f'buffer_load_dwordx4 {vT16}, {WS}, s84 offen offset:{1024*(t % 4)} sc1 lds')
                    if t % 4 == 3: a('s_add_u32 s84, s84, 4096')
                vm.append(wo)
        from gen_p2 import phase2_prefetch_ops
        pf = phase2_prefetch_ops(a, o)
        if 11 <= i < 15: vm += (pf[0]+pf[1])[2*(i-11):2*(i-11)+2]
        if i in (15, 16): vm += pf[2][:3] if i == 15 else pf[2][3:]
        if i == 1: vm.append(lambda: flag_store(a, 2))
        if i == 9: vm.append(lambda: cpf(a, 'L_attn'))
        if i == 16: vm.append(lambda: cpf(a, 'L_p2', -1024))
        if i == C0-1:
            def rl(): st['r'] = flags_issue(a, vWOF, vFP)
            vm.append(rl)
        if C0 <= i < C0+4:
            vm += cold_ops(a, i-C0, st)
        nslots = len(mf)
        nfill = len([f for f in fill if not f.startswith('X')])
        fi = 0; done = 0
        vslots = [1+(k*(nslots-1))//max(1, len(vm)) for k in range(len(vm))]
        for k, (kind, t, T) in enumerate(mf):
            if kind == 'm':
                if T == 0: a.wait_lg(wt[(t, i)])
                c = '0' if i == 0 else vr(acc(T, t), 4)
                if t < 5: a(f'v_mfma_f32_16x16x32_bf16 {vr(acc(T,t),4)}, {ar(wf(i,t),4)}, {vr(hb(i,T),4)}, {c}')
                else:     a(f'v_mfma_f32_16x16x32_bf16 {vr(acc(T,t),4)}, {vr(hb(i,T),4)}, {ar(wf(i,t),4)}, {c}')
                if nxt:
                    if k == 0 and (i+1) % 8 == 0:
                        for v in (vA, vAV): a(f'v_add_u32 {v}, 61440, {v}')
                    if T == 1: wread(t, i+1)
            else:
                tt = HT[t]
                a.wait_lg(hw[(t, u)])
                c = '0' if u == 0 else ar(AHACC+4*t, 4)
                if tt < 5: a(f'v_mfma_f32_16x16x32_bf16 {ar(AHACC+4*t,4)}, {ar(hwf(u,t),4)}, {vr(HH,4)}, {c}')
                else:      a(f'v_mfma_f32_16x16x32_bf16 {ar(AHACC+4*t,4)}, {vr(HH,4)}, {ar(hwf(u,t),4)}, {c}')
                if u+1 < 5:
                    if t == 0 and (u+1) % 2 == 0:
                        for v in (vHA, vHAV): a(f'v_add_u32 {v}, 61440, {v}')
                    v, off = waddr(tt, u+1, halo=True)
                    hw[(t, u+1)] = a.lds(f'ds_read_b128 {ar(hwf(u+1,t),4)}, {v} offset:{off}')
            if dsq and k % 2 == 0 and k < 8:
                gt[i+2] = a.lds(dsq.pop(0))
            lastk = nslots-1
            want = min(nfill, ((k+1)*nfill+lastk)//(lastk+1)) if k < lastk else nfill
            while done < want and fi < len(fill):
                f = fill[fi]; fi += 1
                if f == 'X0': a.wait_vm(xt[(i+1, 1)]); a.wait_lg(gt[i+1])
                elif f == 'XH': a.wait_vm(ht[u]); a.wait_lg(hg[u])
                else: a(f); done += 1
            for vi, vs_ in enumerate(vslots):
                if vs_ == k: vm[vi]()
        if hnext:
            un = i+1-H0
            for op in gs_reads(4*un, vHG, HGS): hg[un] = a.lds(op)
            if un == 0:
                for n in range(6):
                    v, off = waddr(HT[n], 0, halo=True)
                    hw[(n, 0)] = a.lds(f'ds_read_b128 {ar(hwf(0,n),4)}, {v} offset:{off}')
        if i+1+DEPTH < 20: xload(i+1+DEPTH)
    stamp(a, 6)
    attention(a, o, st)

def cold_finish(a, o):
    a(f's_mul_i32 s11, {sM}, 245760'); a(f's_add_u32 s11, s11, {WGU_OFF}')
    a(f'v_lshrrev_b32 v1, 5, {vL}'); a('v_mul_u32_u24 v1, 81920, v1'); a(f'v_and_b32 v2, 31, {vL}'); a('v_lshl_add_u32 v10, v2, 4, v1'); a('v_add_u32 v10, s11, v10')
    a(f'v_lshlrev_b32 v11, 4, {vL}'); a(f'v_add_u32 v11, {2*81920}, v11'); a('v_add_u32 v11, s11, v11')
    a(f's_and_b32 s12, {sM}, 7'); a('s_mul_i32 s12, s12, 245760'); a(f's_add_u32 s12, s12, {WD_OFF}')
    a(f'v_lshrrev_b32 v1, 4, {vL}'); a('v_lshlrev_b32 v1, 10, v1'); a(f'v_and_b32 v2, 15, {vL}'); a('v_lshl_add_u32 v12, v2, 4, v1'); a('v_add_u32 v12, s12, v12')
    a(f'v_lshlrev_b32 v13, 4, {vL}'); a('v_add_u32 v13, 4096, v13'); a('v_add_u32 v13, s12, v13')
    a('v_mov_b32 v3, 0x40000000')
    a(f'v_cmp_gt_u32 vcc, 32, {vL}'); a('v_cndmask_b32 v11, v3, v11, vcc')
    a(f'v_cmp_gt_u32 vcc, 16, {vL}'); a('v_cndmask_b32 v13, v3, v13, vcc')
    a(f's_cmp_eq_u32 {sW}, 1'); a('s_cselect_b32 s13, 1024, 0'); a('v_add_u32 v14, s13, v10'); a('v_add_u32 v15, s13, v11')
    a(f's_cmp_lt_u32 {sW}, 2'); a('s_cselect_b64 s[74:75], -1, 0'); a('v_cndmask_b32 v14, v12, v14, s[74:75]'); a('v_cndmask_b32 v15, v13, v15, s[74:75]')
    a(f's_mul_i32 s13, {sW}, 5120'); a(f's_add_u32 s13, s13, {L_BNC}')
    a(f'v_lshl_add_u32 v4, {vL}, 4, s13')
    a(f'v_lshrrev_b32 v1, 4, {vL}'); a(f'v_and_b32 v2, 3, {vL}'); a(f'v_bfe_u32 v3, {vL}, 2, 2')
    a('v_lshlrev_b32 v1, 5, v1'); a('v_lshl_add_u32 v1, v2, 3, v1'); a('v_add_u32 v1, s13, v1')
    a('v_mad_u32_u24 v5, v3, 64, v1'); a('v_mad_u32_u24 v5, v3, 64, v5'); a('v_mad_u32_u24 v5, v3, 64, v5')
    a('v_mul_u32_u24 v6, 160, v3'); a('v_add_u32 v6, v6, v1')
    a(f's_cmp_lt_u32 {sW}, 2'); a('s_cselect_b64 s[74:75], -1, 0'); a('v_cndmask_b32 v7, v6, v5, s[74:75]')
    R = 84
    dest = [('v10', 'v11', 0), ('v10', 'v11', 1024), ('v14', 'v15', 0), ('v12', 'v13', 0)]
    rdv = [('v5', 192), ('v5', 192), ('v7', None), ('v6', 160)]
    last = None
    for rnd in range(2):
        for j in (2*rnd, 2*rnd+1):
            a.lds(f'ds_write_b128 v4, {ar(COLD+8*j,4)} offset:{2048*(j & 1)}')
            a.lds(f'ds_write_b128 v4, {ar(COLD+8*j+4,4)} offset:{2048*(j & 1)+960}')
        tk = {}
        for j in (2*rnd, 2*rnd+1):
            v, pitch = rdv[j]
            if pitch is None:
                a('s_movk_i32 s13, 640'); a(f's_cmp_lt_u32 {sW}, 2'); a('s_cselect_b32 s13, 768, s13'); a('v_add_u32 v3, s13, v7')
            for ab in (0, 1):
                d = R+8*j+4*ab; o_ = 2048*(j & 1)+128*ab
                a.lds(f'ds_read_b64_tr_b16 {vr(d,2)}, {v} offset:{o_}')
                if pitch is None: tk[j] = a.lds(f'ds_read_b64_tr_b16 {vr(d+2,2)}, v3 offset:{o_}')
                else: tk[j] = a.lds(f'ds_read_b64_tr_b16 {vr(d+2,2)}, {v} offset:{o_+4*pitch}')
        for j in (2*rnd, 2*rnd+1):
            if j < 2: RP.unit_dest_scalar(a, 'wg', sKC[j], 's86', 's87')
            elif j == 2:
                RP.unit_dest_scalar(a, 'wg', sKC[2], 's86', 's87'); RP.unit_dest_scalar(a, 'wd', sKC[2], 's88', 's87')
                a(f's_cmp_lt_u32 {sW}, 2'); a('s_cselect_b32 s86, s86, s88')
            else: RP.unit_dest_scalar(a, 'wd', sKC[3], 's86', 's87')
            a.wait_lg(tk[j])
            va, vb, off = dest[j]
            a.vmem(f'buffer_store_dwordx4 {vr(R+8*j,4)}, {va}, {WS}, s86 offen offset:{off} sc1')
            last = a.vmem(f'buffer_store_dwordx4 {vr(R+8*j+4,4)}, {vb}, {WS}, s86 offen offset:{off} sc1')
    return last

L_EX = 102400
L_HP = 114688

def cross_op(a, op, v, t0, t1):
    for sw in ('v_permlane16_swap_b32', 'v_permlane32_swap_b32'):
        a(f'v_mov_b32 {t0}, {v}'); a(f'v_mov_b32 {t1}, {v}')
        a(f'{sw} {t0}, {t1}')
        a(f'{op} {v}, {t0}, {t1}')

def attention(a, o, st):
    a.label('L_attn')
    Q = 84; K = 100; V = 124; SS = 148; PF = 180; OO = 196; ONE = 212; NEG = 216; CZ = 224; MX = 220
    t0, t1 = 'v217', 'v218'
    def q(T, h): return Q+(T*2+h)*4
    def kf(U, h): return K+(U*2+h)*4
    def vf(T, x): return V+(T*3+x)*4
    def ss(T, h): return SS+(T*2+h)*8
    def pf(T, h): return PF+(T*2+h)*4
    def pk(dst, src):
        a(f'v_cvt_pk_bf16_f32 {vr(dst)}, {vr(src)}, {vr(src+1)}')
        a(f'v_cvt_pk_bf16_f32 {vr(dst+1)}, {vr(src+2)}, {vr(src+3)}')
    def kpack(U, ka, kb, c):
        pk(kf(U, 0), ka); pk(kf(U, 1), kb)
        for d in (0, 1):
            a(f'v_cvt_pk_bf16_f32 {t0}, {vr(c+2*d)}, {vr(c+2*d+1)}')
            a(f'v_mov_b32 {vr(kf(U,0)+2+d)}, {t0}')
            a(f'v_permlane32_swap_b32 {t0}, {vr(kf(U,0)+2+d)}')
            a(f'v_mov_b32 {vr(kf(U,1)+2+d)}, {vr(kf(U,0)+2+d)}')
    def qpack(T):
        pk(q(T, 0), acc(T, 0)); pk(q(T, 1), acc(T, 1))
        for d in (0, 1):
            a(f'v_cvt_pk_bf16_f32 {t0}, {vr(acc(T,4)+2*d)}, {vr(acc(T,4)+2*d+1)}')
            a(f'v_cndmask_b32 {vr(q(T,0)+2+d)}, 0, {t0}, {MG0}')
            a(f'v_cndmask_b32 {vr(q(T,1)+2+d)}, 0, {t0}, {MG1}')
    a(f'v_mov_b32 v{NEG}, 0xf149f2ca')
    for r in range(4): a(f'v_mov_b32 {vr(ONE+r)}, 0x3f803f80')
    a(f's_or_b32 s11, {sSG}, {sW}'); a('s_cmp_eq_u32 s11, 0'); a('s_cselect_b32 s11, 0xf149f2ca, 0')
    for r in range(4): a(f'v_mov_b32 {vr(CZ+r)}, s11')
    a(f's_mul_i32 s11, {sW}, 6144'); a(f's_add_u32 s11, s11, {L_HP}'); a(f'v_add_u32 v1, s11, {vT16}')
    a(f's_mul_i32 s11, {sW}, 3584'); a(f's_add_u32 s11, s11, {L_EX}'); a(f'v_add_u32 v2, s11, {vT16}')
    a(f'v_lshlrev_b32 v5, 3, {vL}'); a('v_add_u32 v5, s11, v5')
    a(f's_lshl_b32 s11, {sSG}, 3'); a(f's_lshl_b32 s12, {sW}, 1'); a('s_add_u32 s11, s11, s12')
    a(f's_mul_i32 s11, s11, {TILE_B}'); a(f's_mul_i32 s12, {sM}, 1280'); a('s_add_u32 s11, s11, s12')
    a(f's_add_u32 s76, s11, {O_OFF}'); a(f's_add_u32 s77, s76, {TILE_B}')
    a(f's_mov_b32 s79, {hex(f2u((DH**-0.5)*1.4426950408889634))}')
    stamp(a, 7)
    a('s_barrier')
    def wo_piece(n=1): pass
    for n in range(6): a.lds(f'ds_write_b128 v1, {ar(AHACC+4*n,4)} offset:{1024*n}')
    kpack(2, acc(1, 2), acc(1, 3), acc(1, 4))
    for x in range(3): pk(vf(1, x)+2, acc(1, 5+x))
    wo_piece()
    Lskip = newlab('noex')
    a(f's_cmp_eq_u32 {sW}, 3'); a(f's_cbranch_scc1 {Lskip}')
    a(f'ds_write_b128 v2, {vr(kf(2,0),4)}')
    a(f'ds_write_b128 v2, {vr(kf(2,1),4)} offset:1024')
    for x in range(3): a(f'ds_write_b64 v5, {vr(vf(1,x)+2,2)} offset:{2048+512*x}')
    a.label(Lskip)
    kpack(1, acc(0, 2), acc(0, 3), acc(0, 4))
    wo_piece()
    qpack(1)
    def s_mfma(T):
        for h in (0, 1):
            a(f'v_mfma_f32_16x16x32_bf16 {vr(ss(T,h),4)}, {vr(kf(T,h),4)}, {vr(q(T,h),4)}, {vr(CZ,4) if T == 0 else "0"}')
            a(f'v_mfma_f32_16x16x32_bf16 {vr(ss(T,h)+4,4)}, {vr(kf(T+1,h),4)}, {vr(q(T,h),4)}, 0')
    s_mfma(1)
    for x in range(3): pk(vf(0, x)+2, acc(0, 5+x)); pk(vf(1, x), acc(0, 5+x))
    wo_piece()
    qpack(0)
    wo_piece()
    def softmax(T):
        for h in (0, 1):
            for r in range(4):
                a(f'v_cndmask_b32 {vr(ss(T,h)+r)}, v{NEG}, {vr(ss(T,h)+r)}, {MPRV[r]}')
                a(f'v_cndmask_b32 {vr(ss(T,h)+4+r)}, v{NEG}, {vr(ss(T,h)+4+r)}, {MCUR[r]}')
        for h in (0, 1):
            b = ss(T, h); m = vr(MX+h)
            a(f'v_max3_f32 {m}, {vr(b)}, {vr(b+1)}, {vr(b+2)}')
        for h in (0, 1):
            b = ss(T, h); m = vr(MX+h); a(f'v_max3_f32 {m}, {m}, {vr(b+3)}, {vr(b+4)}')
        for h in (0, 1):
            b = ss(T, h); m = vr(MX+h); a(f'v_max3_f32 {m}, {m}, {vr(b+5)}, {vr(b+6)}')
        for h in (0, 1):
            b = ss(T, h); m = vr(MX+h); a(f'v_max_f32 {m}, {m}, {vr(b+7)}')
        wo_piece()
        for sw in ('v_permlane16_swap_b32', 'v_permlane32_swap_b32'):
            for h in (0, 1):
                a(f'v_mov_b32 {vr(OO+2*h)}, {vr(MX+h)}'); a(f'v_mov_b32 {vr(OO+2*h+1)}, {vr(MX+h)}')
            for h in (0, 1): a(f'{sw} {vr(OO+2*h)}, {vr(OO+2*h+1)}')
            for h in (0, 1): a(f'v_max_f32 {vr(MX+h)}, {vr(OO+2*h)}, {vr(OO+2*h+1)}')
        for h in (0, 1): a(f'v_mul_f32 {vr(MX+h)}, s79, {vr(MX+h)}')
        for h in (0, 1):
            b = ss(T, h)
            for r in range(8): a(f'v_fma_f32 {vr(b+r)}, {vr(b+r)}, s79, -{vr(MX+h)}')
        wo_piece()
        for h in (0, 1):
            b = ss(T, h)
            for r in range(8): a(f'v_exp_f32 {vr(b+r)}, {vr(b+r)}')
        for h in (0, 1):
            b = ss(T, h)
            for d in range(4): a(f'v_cvt_pk_bf16_f32 {vr(pf(T,h)+d)}, {vr(b+2*d)}, {vr(b+2*d+1)}')
    OB = {1: 20, 0: 44}
    def pv_mfma(T):
        b = OB[T]
        a(f'v_mfma_f32_16x16x32_bf16 {vr(b,4)}, {vr(ONE,4)}, {vr(pf(T,0),4)}, 0')
        a(f'v_mfma_f32_16x16x32_bf16 {vr(b+4,4)}, {vr(ONE,4)}, {vr(pf(T,1),4)}, 0')
        a(f'v_mfma_f32_16x16x32_bf16 {vr(b+8,4)}, {vr(vf(T,0),4)}, {vr(pf(T,0),4)}, 0')
        a(f'v_mfma_f32_16x16x32_bf16 {vr(b+12,4)}, {vr(vf(T,1),4)}, {vr(pf(T,1),4)}, 0')
        a(f'v_mfma_f32_16x16x32_bf16 {vr(b+16,4)}, {vr(vf(T,2),4)}, {vr(pf(T,0),4)}, 0')
        a(f'v_mfma_f32_16x16x32_bf16 {vr(b+20,4)}, {vr(vf(T,2),4)}, {vr(pf(T,1),4)}, 0')
    def finish(T):
        b = OB[T]; so = 's77' if T == 1 else 's76'
        a(f'v_rcp_f32 {vr(b)}, {vr(b)}'); a(f'v_rcp_f32 {vr(b+4)}, {vr(b+4)}')
        for r in range(4): a(f'v_cndmask_b32 {vr(b+16+r)}, {vr(b+20+r)}, {vr(b+16+r)}, {MG0}')
        a(f'v_cndmask_b32 {vr(b+2)}, {vr(b+4)}, {vr(b)}, {MG0}')
        for h in (0, 2):
            a(pkb('mul', b+8+h, b+8+h, ('b', b))); a(pkb('mul', b+12+h, b+12+h, ('b', b+4))); a(pkb('mul', b+16+h, b+16+h, ('b', b+2)))
        pk(b+8, b+8); pk(b+12, b+12); pk(b+16, b+16)
        a.vmem(f'buffer_store_dwordx2 {vr(b+8,2)}, {vO1}, {WS}, {so} offen sc1')
        a.vmem(f'buffer_store_dwordx2 {vr(b+12,2)}, {vO2}, {WS}, {so} offen sc1')
        a('s_mov_b32 exec_hi, 0')
        t = a.vmem(f'buffer_store_dwordx2 {vr(b+16,2)}, {vO3}, {WS}, {so} offen sc1')
        a('s_mov_b32 exec_hi, -1')
        return t
    softmax(1)
    a.wait_all_lg()
    a('s_barrier')
    stamp(a, 8)
    Lw0 = newlab('w0'); Lj = newlab('prevj')
    a(f's_cmp_eq_u32 {sW}, 0'); a(f's_cbranch_scc1 {Lw0}')
    a('v_subrev_u32 v2, 3584, v2'); a('v_subrev_u32 v5, 3584, v5')
    a(f'ds_read_b128 {vr(kf(0,0),4)}, v2')
    a(f'ds_read_b128 {vr(kf(0,1),4)}, v2 offset:1024')
    for x in range(3): a(f'ds_read_b64 {vr(vf(0,x),2)}, v5 offset:{2048+512*x}')
    pv_mfma(1)
    a('s_nop 7')
    a(f's_branch {Lj}')
    a.label(Lw0)
    a(f'v_add_u32 v1, {L_HP}, {vT16}')
    R = 148+16
    HA = 228
    def hdst(n): return (228+4*n) if n < 4 else (196+4*(n-4))
    for n in range(6): a(f'ds_read_b128 {vr(hdst(n),4)}, v1 offset:{1024*n}')
    pv_mfma(1)
    for w in range(1, 4):
        for n in range(6): a(f'ds_read_b128 {vr(148+4*n,4)}, v1 offset:{6144*w+1024*n}')
        a('s_waitcnt lgkmcnt(0)')
        for n in range(6):
            for h in (0, 2): a(pkb('add', hdst(n)+h, hdst(n)+h, 148+4*n+h))
    kpack(0, hdst(0), hdst(1), hdst(2))
    for x in range(3): pk(vf(0, x), hdst(3+x))
    a.label(Lj)
    finish(1)
    a('s_waitcnt lgkmcnt(0)'); a.lg = []
    s_mfma(0)
    wo_piece(2)
    softmax(0)
    pv_mfma(0)
    wo_piece(2)
    last = finish(0)
    stamp(a, 9)
    cold_finish(a, o)
    from gen_p2 import phase2_setup
    wo_piece(3)
    phase2_setup(a, o)
    a.wait_vm(last)
    flag_store(a, 3)
    stamp(a, 10)
    wo_piece(25)
```

```python
from layout import *
import gen as G
from gen import flags_issue, flags_check, pkb, cpf, vr, ar, stamp, set_exec, flag_store, poll_flags, WS, SA, SB, SC_, sW, sSG, sM, sN, sROT, sFL, vL, f2u, srd, newlab

X1A = 240

def multi_gather(a, o, colbases, V):
    L = newlab('mg'); Ld = newlab('mgd')
    set_exec(a, (1 << 40)-1)
    a(f'v_lshlrev_b32 v5, 4, {vL}')
    a(f's_mov_b32 s73, {o.spin}')
    a.label(L)
    for n, cb in enumerate(colbases):
        a(f's_lshl_b32 s12, {cb}, 3'); a(f's_add_u32 s12, s12, {GRAN_OFF}')
        for kq in range(4):
            a(f'buffer_load_dwordx4 {vr(V+16*n+4*kq,4)}, v5, {WS}, s12 offen sc1')
            if kq < 3: a(f's_add_u32 s12, s12, {3840*8}')
    a('s_waitcnt vmcnt(0)'); a.vm = []
    first = True
    for n in range(len(colbases)):
        for kq in range(4):
            b = V+16*n+4*kq
            if first:
                a(f'v_max_u32 v6, {vr(b+1)}, {vr(b+3)}'); a(f'v_min_u32 v7, {vr(b+1)}, {vr(b+3)}'); first = False
            else:
                a(f'v_max3_u32 v6, v6, {vr(b+1)}, {vr(b+3)}'); a(f'v_min3_u32 v7, v7, {vr(b+1)}, {vr(b+3)}')
    a(f'v_cmp_ne_u32 vcc, {sN}, v6'); a(f'v_cmp_ne_u32 s[74:75], {sN}, v7'); a('s_or_b64 vcc, vcc, s[74:75]')
    a('s_sub_u32 s73, s73, 1'); a('s_cmp_eq_u32 s73, 0'); a(f's_cbranch_scc1 {Ld}'); a(f's_cbranch_vccnz {L}')
    a.label(Ld)
    for n in range(len(colbases)):
        b = V+16*n
        for h in (0, 2):
            a(f'v_add_f32 {vr(b+h)}, {vr(b+h)}, {vr(b+4+h)}'); a(f'v_add_f32 {vr(b+8+h)}, {vr(b+8+h)}, {vr(b+12+h)}')
            a(f'v_add_f32 {vr(b+h)}, {vr(b+h)}, {vr(b+8+h)}')
        a(f'v_cvt_pk_bf16_f32 {vr(b+1)}, {vr(b)}, {vr(b+2)}')

def plus_one(a, p, cond=None):
    a(f'v_lshlrev_b32 v6, 16, {vr(p)}'); a(f'v_and_b32 v7, 0xffff0000, {vr(p)}')
    a('v_add_f32 v6, 1.0, v6'); a('v_add_f32 v7, 1.0, v7')
    a(f'v_cvt_pk_bf16_f32 v6, v6, v7')
    if cond: a(f'v_cndmask_b32 {vr(p)}, {vr(p)}, v6, {cond}')
    else: a(f'v_mov_b32 {vr(p)}, v6')

sCB, sRB, sMAT, sKQ, sCK = 's80', 's81', 's28', 's29', 's82'
GA_ = 0
XA_ = 32
OF = 64

def gather_bases(a):
    a(f's_mul_i32 s11, {sCB}, 80')
    a('s_movk_i32 s96, 3200'); a(f's_cmp_eq_u32 {sW}, 0'); a('s_cselect_b32 s96, 1280, s96'); a(f's_cmp_eq_u32 {sW}, 1'); a('s_cselect_b32 s96, 2560, s96'); a('s_add_u32 s96, s96, s11')
    a('s_movk_i32 s97, 1920'); a(f's_cmp_lt_u32 {sW}, 2'); a('s_cselect_b32 s97, 2560, s97'); a(f's_and_b32 s11, {sW}, 1'); a('s_mul_i32 s11, s11, 80'); a('s_add_u32 s97, s97, s11')
    a(f's_mul_i32 s11, {sKQ}, 160'); a('s_cmp_lt_u32 s9, 192'); a('s_cselect_b32 s11, s11, 0'); a('s_add_u32 s97, s97, s11')

def phase2_prefetch_setup(a, o):
    a(f's_and_b32 {sCB}, {sM}, 7'); a(f's_lshr_b32 {sRB}, {sM}, 3')
    a(f's_mul_i32 {sMAT}, s9, 683'); a(f's_lshr_b32 {sMAT}, {sMAT}, 16')
    a(f's_mul_i32 s11, {sMAT}, 96'); a('s_sub_u32 s11, s9, s11')
    a(f's_mul_i32 {sKQ}, s11, 2731'); a(f's_lshr_b32 {sKQ}, {sKQ}, 16')
    a(f's_mul_i32 s12, {sKQ}, 24'); a(f's_sub_u32 {sCK}, s11, s12')
    gather_bases(a)
    for r in ('s96', 's97'): a(f's_lshl_b32 {r}, {r}, 3'); a(f's_add_u32 {r}, {r}, {GRAN_OFF}')
    a(f'v_lshlrev_b32 v249, 4, {vL}'); a('v_mov_b32 v1, 0x40000000'); a(f'v_cmp_gt_u32 vcc, 40, {vL}'); a('v_cndmask_b32 v249, v1, v249, vcc')
    a(f's_lshl_b32 s11, {sSG}, 7'); a(f's_lshl_b32 s12, {sRB}, 6'); a('s_add_u32 s11, s11, s12'); a(f's_lshl_b32 s12, {sW}, 4'); a('s_add_u32 s11, s11, s12')
    a('s_mul_i32 s11, s11, 1280'); a(f's_mul_i32 s12, {sCB}, 160'); a('s_add_u32 s33, s11, s12')
    a(f'v_and_b32 v2, 15, {vL}'); a(f'v_lshrrev_b32 v3, 4, {vL}')
    a('v_mul_u32_u24 v250, 1280, v2'); a('v_lshl_add_u32 v250, v3, 3, v250')

def phase2_prefetch_ops(a, o):
    def gran(n, kq):
        def f():
            r = ('s96', 's97')[n]
            a.vmem(f'buffer_load_dwordx4 {ar(GA_+16*n+4*kq,4)}, v249, {WS}, {r} offen sc1')
            if kq < 3: a(f's_add_u32 {r}, {r}, {3840*8}')
        return f
    def res(nt):
        def f():
            if nt == 0: srd(a, 48, G.P_X, S*D*2)
            a.vmem(f'buffer_load_dwordx2 {ar(XA_+2*nt,2)}, v250, {SB}, s33 offen offset:{32*nt}')
        return f
    return [[gran(0, k) for k in range(4)], [gran(1, k) for k in range(4)], [res(k) for k in range(5)]]

def ut_staging(a):
    a(f's_cmp_eq_u32 {sMAT}, 0')
    a(f's_cselect_b32 s44, s{G.P_WG}, s{G.P_WU}'); a(f's_cselect_b32 s45, s{G.P_WG+1}, s{G.P_WU+1}')
    a(f's_mov_b32 s46, {D*F*2}'); a('s_mov_b32 s47, 0x20000')
    a(f'v_lshrrev_b32 v5, 3, {vL}'); a(f'v_and_b32 v6, 7, {vL}'); a('v_mul_u32_u24 v5, 3072, v5'); a('v_lshl_add_u32 v5, v6, 4, v5')
    a(f's_mul_i32 s12, {sKQ}, 160'); a(f's_mul_i32 s13, {sW}, 40'); a('s_add_u32 s12, s12, s13'); a('s_mul_i32 s12, s12, 3072')
    a(f's_lshl_b32 s13, {sCK}, 7'); a('s_add_u32 s12, s12, s13')
    a('s_cmp_lt_u32 s9, 192'); a('s_cselect_b32 s12, s12, 0x40000000')
    a(f's_mul_i32 s13, {sW}, 5120')
    for t in range(5):
        a(f's_add_u32 m0, s13, {L_UTSTG+1024*t}')
        a.vmem(f'buffer_load_dwordx4 v5, {SA}, s12 offen lds')
        if t < 4: a(f's_add_u32 s12, s12, {8*3072}')

def phase2_vectors(a, o):
    V = 32
    set_exec(a, (1 << 40)-1)
    for i in range(32): a(f'v_accvgpr_read_b32 {vr(V+i)}, {ar(GA_+i)}')
    Lr = newlab('mg'); Ld = newlab('mgd'); Lc = newlab('mgc')
    a(f's_mov_b32 s73, {o.spin}')
    a.label(Lc)
    for q in range(8):
        b = V+4*q
        if q == 0: a(f'v_max_u32 v6, {vr(b+1)}, {vr(b+3)}'); a(f'v_min_u32 v7, {vr(b+1)}, {vr(b+3)}')
        else: a(f'v_max3_u32 v6, v6, {vr(b+1)}, {vr(b+3)}'); a(f'v_min3_u32 v7, v7, {vr(b+1)}, {vr(b+3)}')
    a(f'v_cmp_ne_u32 vcc, {sN}, v6'); a(f'v_cmp_ne_u32 s[74:75], {sN}, v7'); a('s_or_b64 vcc, vcc, s[74:75]')
    a(f's_cbranch_vccz {Ld}')
    a('s_sub_u32 s73, s73, 1'); a('s_cmp_eq_u32 s73, 0'); a(f's_cbranch_scc1 {Ld}')
    gather_bases(a)
    a(f'v_lshlrev_b32 v5, 4, {vL}')
    for n, cb in enumerate(('s96', 's97')):
        a(f's_lshl_b32 s12, {cb}, 3'); a(f's_add_u32 s12, s12, {GRAN_OFF}')
        for kq in range(4):
            a(f'buffer_load_dwordx4 {vr(V+16*n+4*kq,4)}, v5, {WS}, s12 offen sc1')
            if kq < 3: a(f's_add_u32 s12, s12, {3840*8}')
    a('s_waitcnt vmcnt(0)')
    a(f's_branch {Lc}')
    a.label(Ld)
    for n in range(2):
        b = V+16*n
        for h in (0, 2):
            a(f'v_add_f32 {vr(b+h)}, {vr(b+h)}, {vr(b+4+h)}'); a(f'v_add_f32 {vr(b+8+h)}, {vr(b+8+h)}, {vr(b+12+h)}')
            a(f'v_add_f32 {vr(b+h)}, {vr(b+h)}, {vr(b+8+h)}')
        a(f'v_cvt_pk_bf16_f32 {vr(b+1)}, {vr(b)}, {vr(b+2)}')
    a(f's_cmp_eq_u32 {sW}, 1'); a('s_cselect_b64 s[74:75], -1, 0')
    plus_one(a, V+1, 's[74:75]')
    a(f's_cmp_lt_u32 {sW}, 2'); a('s_cselect_b64 s[74:75], -1, 0')
    plus_one(a, V+17, 's[74:75]')
    a(f'v_lshlrev_b32 {vr(V+2)}, 16, {vr(V+1)}'); a(f'v_and_b32 {vr(V+3)}, 0xffff0000, {vr(V+1)}')
    a(f's_min_u32 s11, {sW}, 2'); a('s_mul_i32 s11, s11, 320'); a(f's_add_u32 s11, s11, {L_VEC}')
    a(f'v_lshlrev_b32 v5, 3, {vL}'); a('v_add_u32 v5, s11, v5')
    a.lds(f'ds_write_b64 v5, {vr(V+2,2)}')
    a(f's_lshr_b32 s11, {sW}, 1'); a('s_mul_i32 s11, s11, 384'); a(f's_and_b32 s12, {sW}, 1'); a('s_mul_i32 s12, s12, 160'); a('s_add_u32 s11, s11, s12'); a(f's_add_u32 s11, s11, {L_VG}')
    a(f'v_lshlrev_b32 v5, 2, {vL}'); a('v_add_u32 v5, s11, v5')
    a.lds(f'ds_write_b32 v5, {vr(V+17)}')
    set_exec(a, (1 << 64)-1)
    a.wait_all_lg()

def ut_job(a):
    a(f'v_and_b32 v2, 15, {vL}'); a(f'v_lshrrev_b32 v3, 4, {vL}')
    a('v_lshrrev_b32 v6, 2, v2'); a('v_lshl_add_u32 v6, v3, 3, v6'); a('v_lshlrev_b32 v6, 7, v6'); a('v_and_b32 v7, 3, v2'); a('v_lshl_add_u32 v6, v7, 3, v6')
    a(f's_lshl_b32 s11, {sW}, 5'); a(f's_add_u32 s11, s11, {L_UTSTG}'); a('v_add_u32 v6, s11, v6')
    a('v_lshrrev_b32 v7, 3, v2'); a('v_mul_u32_u24 v7, 384, v7'); a('v_lshl_add_u32 v7, v3, 4, v7'); a(f'v_add_u32 v7, {L_VG}, v7')
    UA = 228; WF = 208; VF = 188
    tk = []
    for s in range(5):
        a.lds(f'ds_read_b128 {vr(VF+4*s,4)}, v7 offset:{64*s}')
        a.lds(f'ds_read_b64_tr_b16 {vr(WF+4*s,2)}, v6 offset:{4096*s}')
        tk.append(a.lds(f'ds_read_b64_tr_b16 {vr(WF+4*s+2,2)}, v6 offset:{4096*s+512}'))
    for s in range(5):
        a.wait_lg(tk[s])
        a(f'v_mfma_f32_16x16x32_bf16 {vr(UA,4)}, {vr(WF+4*s,4)}, {vr(VF+4*s,4)}, {"0" if s == 0 else vr(UA,4)}')
    a(f's_lshl_b32 s11, {sKQ}, 1'); a(f's_add_u32 s11, s11, {sMAT}'); a('s_mul_i32 s11, s11, 3072'); a(f's_lshl_b32 s12, {sCK}, 6'); a('s_add_u32 s11, s11, s12')
    a(f's_lshl_b32 s12, {sW}, 4'); a('s_add_u32 s11, s11, s12'); a('s_lshl_b32 s11, s11, 2'); a(f's_add_u32 s11, s11, {UT_OFF}')
    a('s_cmp_lt_u32 s9, 192'); a('s_cselect_b32 s11, s11, 0x40000000')
    a('v_lshrrev_b32 v7, 3, v2'); a('v_mul_u32_u24 v7, 6144, v7'); a('v_lshl_add_u32 v7, v3, 4, v7')
    set_exec(a, 0x0101010101010101)
    a.vmem(f'buffer_store_dwordx4 {vr(UA,4)}, v7, {WS}, s11 offen sc1')
    set_exec(a, (1 << 64)-1)

def phase2_setup(a, o):
    a(f'v_lshlrev_b32 v8, 4, {vL}')
    a(f's_lshl_b32 s11, {sRB}, 2'); a(f's_add_u32 s11, s11, {sW}'); a(f's_lshl_b32 s13, {sSG}, 3'); a('s_add_u32 s87, s13, s11')
    a(f'v_and_b32 v2, 15, {vL}'); a(f'v_lshrrev_b32 v3, 4, {vL}')
    a('v_and_b32 v5, 1, v3'); a('v_lshlrev_b32 v5, 1, v5'); a('v_lshrrev_b32 v6, 1, v3'); a('v_add_u32 v5, v5, v6')
    a('v_lshlrev_b32 v5, 8, v5'); a('v_lshl_add_u32 v25, v2, 4, v5')
    a(f's_mul_i32 s77, s87, {TILE_B}'); a(f's_mul_i32 s13, {sCB}, 2560'); a('s_add_u32 s77, s77, s13'); a(f's_add_u32 s77, s77, {Y_OFF}')
    a(f's_lshl_b32 s76, {sSG}, 1'); a(f's_add_u32 s76, s76, {sRB}'); a('s_lshl_b32 s76, s76, 3'); a(f's_add_u32 s76, s76, {sCB}'); a('s_lshl_b32 s76, s76, 6')
    a(f's_lshl_b32 s12, {sW}, 4'); a('s_add_u32 s76, s76, s12'); a('s_lshl_b32 s76, s76, 3'); a(f's_add_u32 s76, s76, {STAT_OFF}')
    a(f'v_lshlrev_b32 v26, 3, {vL}')
    a(f'v_lshrrev_b32 v5, 2, {vL}'); a('v_lshlrev_b32 v5, 4, v5'); a(f'v_add_u32 v5, {sM}, v5'); a(f'v_and_b32 v6, 3, {vL}'); a('v_lshl_add_u32 v5, v5, 2, v6')
    a('v_lshlrev_b32 v5, 7, v5'); a(f'v_add_u32 v23, {FLAG_OFF}, v5')
    a(f's_mul_i32 s12, {sM}, 3'); a('s_lshr_b32 s12, s12, 1')
    a(f'v_lshrrev_b32 v5, 2, {vL}')
    a('v_and_b32 v6, 1, v5'); a('v_add_u32 v6, s12, v6'); a('v_min_u32 v6, 23, v6')
    a('v_bfe_u32 v7, v5, 1, 2'); a('v_mul_u32_u24 v7, 24, v7'); a('v_add_u32 v6, v6, v7')
    a('v_lshrrev_b32 v7, 3, v5'); a('v_mul_u32_u24 v7, 96, v7'); a('v_add_u32 v6, v6, v7')
    a(f'v_and_b32 v7, 3, {vL}'); a('v_lshl_add_u32 v6, v6, 2, v7'); a('v_lshlrev_b32 v6, 7, v6'); a(f'v_add_u32 v24, {FLAG_OFF}, v6')
    a(f's_lshl_b32 s90, {sW}, 10')
    a(f's_mul_i32 s88, {sM}, 245760'); a(f's_add_u32 s88, s88, {WGU_OFF}'); a('s_add_u32 s88, s88, s90')
    a(f's_mul_i32 s89, {sCB}, 245760'); a(f's_add_u32 s89, s89, {WD_OFF}'); a('s_add_u32 s89, s89, s90')
    a('s_lshr_b32 s12, s11, 1'); a(f's_lshl_b32 s13, {sSG}, 6'); a('s_add_u32 s12, s12, s13')
    a(f'v_lshl_add_u32 v5, {vL}, 2, s12'); a('v_lshlrev_b32 v5, 7, v5'); a(f'v_add_u32 v29, {FLAG_OFF}, v5')
    a(f's_mul_i32 s12, s87, {TILE_B}'); a(f's_add_u32 s12, s12, {O_OFF}')
    a(f'v_add_u32 v9, 61440, v8')
    a('s_mov_b32 s55, s12')

def phase2(a, o):
    a.comment('================ phase 2')
    a.label('L_p2')
    GA = 32; G2 = 96; XF = 168; ACC = 64; WB = 128
    cpf(a, 'L_p2', 2048)
    a('s_barrier')
    ut_staging(a)
    a('s_waitcnt vmcnt(5)')
    flag_store(a, 4)
    stamp(a, 12)
    def waddr(nt, s):
        off = nt*20480+s*1024
        return ('v8', off) if off < 61440 else ('v9', off-61440)
    wt = {}
    seq = [(s, nt) for s in range(20) for nt in range(5)]
    def rd(idx):
        s, nt = seq[idx]; v, off = waddr(nt, s)
        wt[idx] = a.lds(f'ds_read_b128 {vr(WB+4*(idx%10),4)}, {v} offset:{off}')
    phase2_vectors(a, o)
    a.wait_all_vm()
    a('s_barrier')
    a(f'v_lshrrev_b32 v3, 4, {vL}'); a('v_lshlrev_b32 v4, 4, v3'); a(f'v_add_u32 v4, {L_VEC}, v4')
    for nt in range(5):
        a.lds(f'ds_read_b128 {vr(GA+4*nt,4)}, v4 offset:{64*nt}')
        a.lds(f'ds_read_b128 {vr(G2+4*nt,4)}, v4 offset:{320+64*nt}')
    ut_job(a)
    for idx in range(9): rd(idx)
    a('s_mov_b32 s11, 0xffff0000')
    for i in range(10):
        a(f'v_accvgpr_read_b32 v1, {ar(XA_+i)}')
        a(f'v_lshlrev_b32 {vr(XF+2*i)}, 16, v1'); a(f'v_and_b32 {vr(XF+2*i+1)}, s11, v1')
    poll_flags(a, 'v29', 16, 3, 'v6')
    stamp(a, 13)
    a('s_mov_b32 s12, s55')
    ot = {}
    def oload(s):
        ot[s] = a.vmem(f'buffer_load_dwordx4 {ar(OF+4*s,4)}, v8, {WS}, s12 offen offset:{1024*(s%4)} sc1')
        if s % 4 == 3 and s < 19: a('s_add_u32 s12, s12, 4096')
    for s in range(12): oload(s)
    tf1 = flags_issue(a, 'v23', 'v21')
    from gen_p3 import Dma, gu_group
    dg = Dma(a, 's88')
    early = [lambda g=g: gu_group(dg, 0, g) for g in range(13)]
    for idx, (s, nt) in enumerate(seq):
        if nt == 0: a.wait_vm(ot[s])
        a.wait_lg(wt[idx])
        a(f'v_mfma_f32_16x16x32_bf16 {vr(ACC+4*nt,4)}, {vr(WB+4*(idx%10),4)}, {ar(OF+4*s,4)}, {"0" if s == 0 else vr(ACC+4*nt,4)}')
        if idx+9 < len(seq): rd(idx+9)
        if nt == 1 and s+12 < 20: oload(s+12)
        if idx == 45: flag_store(a, 5)
        if idx == 30:
            flags_check(a, tf1, 'v23', 'v21', 4)
            a('s_barrier')
        if idx >= 32 and idx % 5 == 3 and early: early.pop(0)()
        if idx == 62:
            nsh = 4 if getattr(o, 'map2d', 1) else 2
            a(f's_and_b32 s11, {sSG}, {nsh-1}'); a(f's_mul_i32 s11, s11, {102400//nsh}'); a(f's_lshl_b32 s13, {sW}, 13'); a('s_add_u32 s11, s11, s13')
            a('s_sub_u32 s13, s88, s90'); a('s_add_u32 s11, s11, s13'); a(f's_add_u32 s11, s11, {26*2048}')
            a(f'v_lshlrev_b32 v27, 7, {vL}')
        if idx == 64 or (idx == 74 and not getattr(o, 'map2d', 1)):
            a.vmem(f'buffer_load_dword v254, v27, {WS}, s11 offen sc1', optional=True)
            a('s_add_u32 s11, s11, 32768')
    assert not early
    stamp(a, 14)
    a('s_barrier')
    if getattr(o, 'fine', 0) == 4: stamp(a, 36)
    pieces = [lambda g=g: gu_group(dg, 0, g) for g in range(13, 20)]
    pieces += [lambda g=g: gu_group(dg, 1, g) for g in range(18)]
    PK = 148; YP = 128
    ops = []
    ops += [pkb('fma', XF+2*i, GA+2*i, ACC+2*i, XF+2*i) for i in range(10)]
    ops += [f'v_cvt_pk_bf16_f32 {vr(PK+i)}, {vr(XF+2*i)}, {vr(XF+2*i+1)}' for i in range(10)]
    ops += ['s_mov_b32 s11, 0xffff0000']
    for i in range(10): ops += [f'v_lshlrev_b32 {vr(XF+2*i)}, 16, {vr(PK+i)}', f'v_and_b32 {vr(XF+2*i+1)}, s11, {vr(PK+i)}']
    ops += [pkb('mul', G2+2*i, G2+2*i, XF+2*i) for i in range(10)]
    ops += [f'v_cvt_pk_bf16_f32 {vr(YP+i)}, {vr(G2+2*i)}, {vr(G2+2*i+1)}' for i in range(10)]
    ops += [f'v_mov_b32 {vr(YP+10)}, {vr(YP+8)}', f'v_mov_b32 {vr(YP+11)}, {vr(YP+9)}']
    for p in range(3):
        for d in (0, 1): ops.append(f'v_permlane16_swap_b32 {vr(YP+4*p+d)}, {vr(YP+4*p+2+d)}')
    pi = 0
    for k, op in enumerate(ops):
        a(op)
        if k % 14 == 5 and pi < 5: pieces[pi](); pi += 1
    if getattr(o, 'fine', 0) == 4: stamp(a, 37)
    a.vmem(f'buffer_store_dwordx4 {vr(YP,4)}, v25, {WS}, s77 offen sc1')
    a.vmem(f'buffer_store_dwordx4 {vr(YP+4,4)}, v25, {WS}, s77 offen offset:1024 sc1')
    set_exec(a, 0x0000ffff0000ffff)
    a.vmem(f'buffer_store_dwordx4 {vr(YP+8,4)}, v25, {WS}, s77 offen offset:2048 sc1')
    set_exec(a, (1 << 64)-1)
    while pi < 7: pieces[pi](); pi += 1
    a(pkb('add', 12, XF, XF+2)); a(pkb('mul', 14, XF, XF)); a(pkb('fma', 14, XF+2, XF+2, 14))
    for i in range(2, 10):
        a(pkb('add', 12, 12, XF+2*i)); a(pkb('fma', 14, XF+2*i, XF+2*i, 14))
    a('v_add_f32 v12, v12, v13'); a('v_add_f32 v13, v14, v15')
    for sw in ('v_permlane16_swap_b32', 'v_permlane32_swap_b32'):
        a('v_mov_b32 v14, v12'); a('v_mov_b32 v15, v12'); a('v_mov_b32 v28, v13'); a('v_mov_b32 v29, v13')
        a(f'{sw} v14, v15'); a(f'{sw} v28, v29')
        a('v_add_f32 v12, v14, v15'); a('v_add_f32 v13, v28, v29')
    set_exec(a, 0xffff)
    tl = a.vmem(f'buffer_store_dwordx2 v[12:13], v26, {WS}, s76 offen sc1')
    set_exec(a, (1 << 64)-1)
    for i in range(10): a(f'v_accvgpr_write_b32 {ar(X1A+i)}, {vr(PK+i)}')
    if getattr(o, 'fine', 0) == 4: stamp(a, 38)
    while pi < 13: pieces[pi](); pi += 1
    a.rest_pieces = pieces[pi:]
    stamp(a, 15)
    return tl
```

```python
from layout import *
import gen as G
from gen import vr, ar, WS, vL, sW, sSG, sM

SEL_LO, SEL_HI = 's98', 's99'
OOB = 0x40000000

def srd_for(a, base, ptr, size):
    a(f's_mov_b32 s{base}, s{ptr}'); a(f's_mov_b32 s{base+1}, s{ptr+1}'); a(f's_mov_b32 s{base+2}, {size}'); a(f's_mov_b32 s{base+3}, 0x20000')

def lane_maps(a, kind, vsrc, vdst, t1, t2, t3):
    if kind == 'wq':
        a(f'v_mul_u32_u24 {t1}, 3277, {vL}'); a(f'v_lshrrev_b32 {t1}, 16, {t1}')
        a(f'v_mul_u32_u24 {t2}, 20, {t1}'); a(f'v_sub_u32 {t2}, {vL}, {t2}')
        a(f'v_mul_u32_u24 {t3}, 1280, {t1}'); a(f'v_lshl_add_u32 {vsrc}, {t2}, 2, {t3}')
        a(f's_mul_i32 s11, {sM}, 80'); a(f'v_add_u32 {vsrc}, s11, {vsrc}')
        a(f'v_lshlrev_b32 {t2}, 1, {t2}')
        b = int(vdst[1:]); vs = vr(b+1)
        a(f'v_cmp_le_u32 vcc, 20, {t2}'); a(f'v_cndmask_b32 v4, 0, 1, vcc')
        a(f'v_mul_u32_u24 v5, 20, v4'); a(f'v_sub_u32 {t2}, {t2}, v5')
        a(f'v_lshlrev_b32 v5, 1, {t1}'); a(f'v_cmp_eq_u32 vcc, 2, {t1}'); a('v_mov_b32 v6, 5'); a('v_cndmask_b32 v5, v5, v6, vcc')
        a('v_add_u32 v5, v5, v4'); a('v_lshlrev_b32 v5, 10, v5'); a(f'v_lshl_add_u32 v5, {t2}, 4, v5')
        a(f'v_subrev_u32 v6, 16, {t2}'); a('v_lshl_add_u32 v6, v4, 2, v6'); a('v_lshlrev_b32 v6, 4, v6')
        a(f'v_lshlrev_b32 v7, 7, {t1}'); a('v_add_u32 v7, 4096, v7')
        a('v_mov_b32 v4, 7168'); a('v_cndmask_b32 v7, v7, v4, vcc'); a('v_add_u32 v6, v6, v7')
        a(f'v_cmp_le_u32 s[74:75], 16, {t2}')
        a(f'v_cndmask_b32 {vdst}, v5, v6, s[74:75]')
        a(f's_mul_i32 s11, {sM}, 153600'); a(f's_add_u32 s11, s11, {WQ_OFF}'); a(f'v_add_u32 {vdst}, s11, {vdst}')
        a('s_and_b64 vcc, vcc, s[74:75]')
        a('v_mov_b32 v4, 128'); a('v_mov_b32 v6, 256'); a(f'v_cndmask_b32 {vs}, v6, v4, vcc')
        nl = 60
    elif kind in ('wg', 'wu'):
        a(f's_mul_i32 s11, {sM}, 192'); a(f'v_lshl_add_u32 {vsrc}, {vL}, 2, s11')
        a(f'v_lshrrev_b32 {t1}, 4, {vL}'); a(f'v_mul_u32_u24 {t1}, 81920, {t1}'); a(f'v_and_b32 {t2}, 15, {vL}'); a(f'v_lshl_add_u32 {vdst}, {t2}, 5, {t1}')
        a(f's_mul_i32 s11, {sM}, 245760'); a(f's_add_u32 s11, s11, {WGU_OFF+(1024 if kind == "wu" else 0)}'); a(f'v_add_u32 {vdst}, s11, {vdst}')
        nl = 48
    else:
        a(f's_and_b32 s12, {sM}, 7'); a('s_mul_i32 s11, s12, 160'); a(f'v_lshl_add_u32 {vsrc}, {vL}, 2, s11')
        a(f'v_lshrrev_b32 {t1}, 3, {vL}'); a(f'v_mul_u32_u24 {t1}, {20480 if kind == "wo" else 1024}, {t1}'); a(f'v_and_b32 {t2}, 7, {vL}'); a(f'v_lshl_add_u32 {vdst}, {t2}, 5, {t1}')
        a(f's_mul_i32 s11, s12, {102400 if kind == "wo" else 245760}'); a(f's_add_u32 s11, s11, {WO_OFF if kind == "wo" else WD_OFF}'); a(f'v_add_u32 {vdst}, s11, {vdst}')
        nl = 40
    a(f'v_mov_b32 {t1}, {hex(OOB)}'); a(f'v_cmp_gt_u32 vcc, {nl}, {vL}')
    a(f'v_cndmask_b32 {vsrc}, {t1}, {vsrc}, vcc'); a(f'v_cndmask_b32 {vdst}, {t1}, {vdst}, vcc')

PITCH = {'wq': 3840, 'wg': 3072, 'wu': 3072, 'wo': 1280, 'wd': 1280}

def unit_loads(a, srd, skc, pitch, vsrc, dst, areg=False, stmp='s12', valid=None):
    if isinstance(pitch, int): a(f's_mul_i32 {stmp}, {skc}, {8*pitch}')
    else: a(f's_mul_i32 {stmp}, {skc}, {pitch}'); a(f's_lshl_b32 {stmp}, {stmp}, 3')
    if valid: a(f's_cmp_lg_u32 {valid}, 0'); a(f's_cselect_b32 {stmp}, {stmp}, {hex(OOB)}')
    tk = None
    for e in range(8):
        r = ar(dst+e) if areg else vr(dst+e)
        tk = a.vmem(f'buffer_load_dword {r}, {vsrc}, {srd}, {stmp} offen')
        if e < 7: a(f's_add_u32 {stmp}, {stmp}, {pitch}')
    return tk

def unit_dest_scalar(a, kind, skc, sout, stmp):
    if kind in ('wg', 'wu'):
        a(f's_and_b32 {stmp}, {skc}, 1'); a(f's_lshr_b32 {sout}, {skc}, 1'); a(f's_lshl_b32 {sout}, {sout}, 11'); a(f's_lshl_b32 {stmp}, {stmp}, 9'); a(f's_add_u32 {sout}, {sout}, {stmp}')
    else:
        mul = {'wo': 1024, 'wd': 5120, 'wq': 7680}[kind]
        a(f's_lshr_b32 {sout}, {skc}, 2')
        if kind == 'wd':
            a(f's_mul_i32 {stmp}, {sout}, 21846'); a(f's_lshr_b32 {stmp}, {stmp}, 16')
            a(f's_mul_i32 s72, {stmp}, 3'); a(f's_sub_u32 {sout}, {sout}, s72'); a(f's_lshl_b32 {sout}, {sout}, 4'); a(f's_add_u32 {sout}, {sout}, {stmp}')
        a(f's_mul_i32 {sout}, {sout}, {mul}'); a(f's_and_b32 {stmp}, {skc}, 3')
        if kind != 'wq':
            a(f's_lshl_b32 {stmp}, {stmp}, 8'); a(f's_add_u32 {sout}, {sout}, {stmp}')

def unit_store(a, R, out, vaddr, soff):
    for d in range(4):
        a(f'v_perm_b32 {vr(out+d)}, {vr(R+2*d+1)}, {vr(R+2*d)}, {SEL_LO}')
        a(f'v_perm_b32 {vr(out+4+d)}, {vr(R+2*d+1)}, {vr(R+2*d)}, {SEL_HI}')
    a.vmem(f'buffer_store_dwordx4 {vr(out,4)}, {vaddr}, {WS}, {soff} offen sc1')
    return a.vmem(f'buffer_store_dwordx4 {vr(out+4,4)}, {vaddr}, {WS}, {soff} offen offset:16 sc1')

def unit_load_ops(a, srd, skc, pitch, vsrc, dst, stmp, box):
    fs = []
    for e in range(8):
        def f(e=e):
            if e == 0:
                if isinstance(pitch, int): a(f's_mul_i32 {stmp}, {skc}, {8*pitch}')
                else: a(f's_mul_i32 {stmp}, {skc}, {pitch}'); a(f's_lshl_b32 {stmp}, {stmp}, 3')
            else: a(f's_add_u32 {stmp}, {stmp}, {pitch}')
            box['cold'] = a.vmem(f'buffer_load_dword {ar(dst+e)}, {vsrc}, {srd}, {stmp} offen')
        fs.append(f)
    return fs
```
